```python
import torch

def _softmax(x, axis=-1):
    return torch.softmax(x, dim=axis)
def _gelu(x):
    return torch.nn.functional.gelu(x, approximate="tanh")
def _silu(x):
    return torch.nn.functional.silu(x)
def _sigmoid(x):
    return torch.sigmoid(x)
def _layernorm(x, axis=-1, eps=1e-5):
    m = x.mean(dim=axis, keepdim=True)
    v = x.var(dim=axis, keepdim=True, unbiased=False)
    return (x - m) / torch.sqrt(v + eps)
def _scatter_add(tgt, idx, src, axis=0):
    return tgt.clone().index_add_(axis, idx, src)
def _segment_sum(src, seg, n):
    out = torch.zeros((n,) + src.shape[1:], dtype=src.dtype)
    return out.index_add_(0, seg, src)
def _pad(x, pw):
    flat = tuple(v for pair in reversed(pw) for v in pair)
    return torch.nn.functional.pad(x, flat)

kernel_name = 'sequential_preLN__ssm_conv_s4__glu_gated_swiglu__prompt'

def setup_inputs():

    _w = (lambda a: (lambda t: t.to(torch.bfloat16) if t.is_floating_point() else t)(torch.as_tensor(a)))
    def _A_setup():
        B, L, D, N = 1, 2048, 576, 128
        A_re = -(lambda _x: torch.exp(torch.as_tensor(_x)))((lambda *s: torch.randn(*s, dtype=torch.bfloat16) * 6.4)(D, N))
        A_im = torch.pi * (lambda *s: torch.randn(*s, dtype=torch.bfloat16) * 0.05)(D, N)
        B_re = (lambda *s: torch.randn(*s, dtype=torch.bfloat16) * 0.05)(D, N)
        B_im = (lambda *s: torch.randn(*s, dtype=torch.bfloat16) * 0.05)(D, N)
        C_re = (lambda *s: torch.randn(*s, dtype=torch.bfloat16) * 0.05)(D, N)
        C_im = (lambda *s: torch.randn(*s, dtype=torch.bfloat16) * 0.05)(D, N)
        log_dt = (lambda *s: torch.randn(*s, dtype=torch.bfloat16) * 0.05)(D) * 0.5 - 4.0
        Dskip = (lambda *s: torch.randn(*s, dtype=torch.bfloat16) * 0.05)(D)
        return {
            "u": _w((lambda *s: torch.randn(*s, dtype=torch.bfloat16) * 0.05)(B, L, D)),
            "A_re": _w(A_re),
            "A_im": _w(A_im),
            "B_re": _w(B_re),
            "B_im": _w(B_im),
            "C_re": _w(C_re),
            "C_im": _w(C_im),
            "log_dt": _w(log_dt),
            "Dskip": _w(Dskip),
        }
    _A_in = _A_setup()

    def _B_setup():
        B, S, D, F = 1, 2048, 576, 4608
        return {
            "x": _w((lambda *s: torch.randn(*s, dtype=torch.bfloat16) * 0.05)(B, S, D)),
            "w1": _w((lambda *s: torch.randn(*s, dtype=torch.bfloat16) * 0.4)(D, F) * (2.0 / D) ** 0.5),
            "w3": _w((lambda *s: torch.randn(*s, dtype=torch.bfloat16) * 0.4)(D, F) * (2.0 / D) ** 0.5),
            "w2": _w((lambda *s: torch.randn(*s, dtype=torch.bfloat16) * 0.4)(F, D) * (2.0 / F) ** 0.5),
        }
    _B_in = _B_setup()

    return {
        "A_u": _A_in["u"],
        "A_A_re": _A_in["A_re"],
        "A_A_im": _A_in["A_im"],
        "A_B_re": _A_in["B_re"],
        "A_B_im": _A_in["B_im"],
        "A_C_re": _A_in["C_re"],
        "A_C_im": _A_in["C_im"],
        "A_log_dt": _A_in["log_dt"],
        "A_Dskip": _A_in["Dskip"],
        "B_x": _B_in["x"],
        "B_w1": _B_in["w1"],
        "B_w3": _B_in["w3"],
        "B_w2": _B_in["w2"],
    }

def reference(A_u, A_A_re, A_A_im, A_B_re, A_B_im, A_C_re, A_C_im, A_log_dt, A_Dskip, B_x, B_w1, B_w3, B_w2):
    def _A_ref(u, A_re, A_im, B_re, B_im, C_re, C_im, log_dt, Dskip):
        Bsz, L, D = u.shape
        dt = torch.exp(log_dt)[:, None]
        A = A_re + 1j * A_im
        Bc = B_re + 1j * B_im
        Cc = C_re + 1j * C_im
        logdA = dt * A
        dB = dt * Bc
        l = (lambda x, dt: x.to(dt))(torch.arange(L), A_re.dtype)
        P = torch.exp(logdA[:, :, None] * l[None, None, :])
        K = torch.einsum("dn,dnl,dn->dl", Cc, P, dB).real
        L2 = 2 * L
        Kp = _pad(K, ((0, 0), (0, L)))
        up = (lambda x, *d: x.permute(*d))(u, 0, 2, 1)
        up = _pad(up, ((0, 0), (0, 0), (0, L)))
        Kf = (lambda x, axes=(-2,-1): torch.fft.rfft2(x.float(), dim=axes))(Kp[:, None, :], axes=(-2, -1))
        Uf = (lambda x, axes=(-2,-1): torch.fft.rfft2(x.float(), dim=axes))(up[:, :, None, :], axes=(-2, -1))
        Yf = Uf * Kf[None, :, :, :]
        y = (lambda x, s, axes=(-2,-1): torch.fft.irfft2(x, s=s, dim=axes).to(torch.bfloat16))(Yf, (1, L2), axes=(-2, -1))[:, :, 0, :L]
        y = (lambda x, *d: x.permute(*d))(y, 0, 2, 1) + u * Dskip[None, None, :]
        return y

    def _B_ref(x, w1, w3, w2):
        gate = torch.einsum("bsd,df->bsf", x, w1)
        up = torch.einsum("bsd,df->bsf", x, w3)
        h = _silu(gate) * up
        out = torch.einsum("bsf,fd->bsd", h, w2)
        return out

    x = A_u
    h = x + _A_ref(_layernorm(x, axis=-1), A_A_re, A_A_im, A_B_re, A_B_im, A_C_re, A_C_im, A_log_dt, A_Dskip)
    h2 = h + _B_ref(_layernorm(h, axis=-1), B_w1, B_w3, B_w2)
    return h2
```

```python
class Asm:
    def __init__(self):
        self.lines = []
    def __call__(self, s):
        for ln in s.strip("\n").split("\n"):
            self.lines.append("    " + ln.strip())
    def label(self, name):
        self.lines.append(name + ":")
    def raw(self, s):
        self.lines.append(s)
    def text(self):
        return "\n".join(self.lines) + "\n"

WS_STATS1 = 0
WS_KSCALE = 0x8000
WS_KEXP   = 0x10000
KROW      = 4352
WS_H      = 0x300000
WS_HN     = 0x600000
WS_HH     = 0x900000
WS_END    = 0x1B00000

ARG = dict(x=0, A_re=8, A_im=16, B_re=24, B_im=32, C_re=40, C_im=48, log_dt=56, Dskip=64, B_x=72,
           w1=80, w3=88, w2=96, out=104, dbg=112, ws=120)

def kernel_header(a, name):
    a.raw(f".globl {name}")
    a.raw(".p2align 8")
    a.raw(f".type {name},@function")
    a.label(name)

def kernel_desc(name, vgpr, agpr=0, sgpr=102):
    acc = (vgpr + 3) // 4 * 4
    nfv = acc + agpr if agpr else vgpr
    return f""".amdhsa_kernel {name}
  .amdhsa_next_free_vgpr {nfv}
  .amdhsa_next_free_sgpr {sgpr}
  .amdhsa_accum_offset {acc}
  .amdhsa_group_segment_fixed_size 0
  .amdhsa_kernarg_size 128
  .amdhsa_user_sgpr_count 2
  .amdhsa_user_sgpr_kernarg_segment_ptr 1
  .amdhsa_system_sgpr_workgroup_id_x 1
.end_amdhsa_kernel
"""

def srd(a, d, base_lo, nbytes, add=0):
    if add:
        a(f"s_add_u32 s{d}, s{base_lo}, {add}")
        a(f"s_addc_u32 s{d+1}, s{base_lo+1}, 0")
    else:
        a(f"s_mov_b32 s{d}, s{base_lo}")
        a(f"s_mov_b32 s{d+1}, s{base_lo+1}")
    a(f"s_and_b32 s{d+1}, s{d+1}, 0xffff")
    a(f"s_mov_b32 s{d+2}, {nbytes}")
    a(f"s_mov_b32 s{d+3}, 0x00020000")

def f32hex(x):
    import struct
    return "0x%08x" % struct.unpack("<I", struct.pack("<f", x))[0]
```

```python
from gen_common import *

CSTR = 4384
CH_STRIDE = 8 * CSTR + KROW
CONV_LDS = 4 * CH_STRIDE

def conv_kernel(a, name):
    kernel_header(a, name)
    a("s_cmp_ge_u32 s2, 144")
    a(f"s_cbranch_scc1 {name}_end")
    a(f"s_load_dwordx2 s[4:5], s[0:1], {ARG['x']}")
    a(f"s_load_dwordx2 s[6:7], s[0:1], {ARG['ws']}")
    a(f"s_load_dwordx2 s[28:29], s[0:1], {ARG['Dskip']}")
    a("""
    v_lshrrev_b32 v1, 6, v0             ; wave
    v_and_b32 v2, 63, v0                ; lane
    s_nop 0
    v_readfirstlane_b32 s3, v1
    s_waitcnt lgkmcnt(0)
    """)
    srd(a, 8, 4, 2048 * 1152)
    srd(a, 12, 6, 2048 * 8, WS_STATS1)
    srd(a, 16, 6, 576 * KROW, WS_KEXP)
    srd(a, 20, 6, 2048 * 1152, WS_H)
    a(f"""
    s_lshl_b32 s24, s2, 3
    s_add_u32 s28, s28, s24
    s_addc_u32 s29, s29, 0
    s_load_dwordx2 s[30:31], s[28:29], 0
    s_lshl_b32 s24, s2, 4
    s_add_u32 s26, s6, s24
    s_addc_u32 s27, s7, 0
    s_load_dwordx4 s[32:35], s[26:27], {WS_KSCALE}
    """)
    a(f"""
    s_lshl_b32 s24, s2, 2
    s_add_u32 s24, s24, s3              ; channel
    s_mul_i32 s24, s24, {KROW}
    s_mul_i32 s25, s3, {CH_STRIDE}
    s_add_u32 s36, s25, {8*CSTR}
    v_lshlrev_b32 v3, 4, v2             ; lane*16
    """)
    for i in range(5):
        if i == 4:
            a("s_mov_b64 exec, 0xffff")
        a(f"s_add_u32 m0, s36, {1024*i}")
        a(f"s_add_u32 s37, s24, {1024*i}")
        a(f"buffer_load_dwordx4 v3, s[16:19], s37 offen lds")
    a("s_mov_b64 exec, -1")
    a("""
    v_mul_u32_u24 v4, 1152, v0
    s_lshl_b32 s24, s2, 3
    v_add_u32 v4, s24, v4
    v_lshlrev_b32 v5, 3, v0
    """)
    for i in range(8):
        a(f"s_mov_b32 s37, {256*1152*i}")
        a(f"buffer_load_dwordx2 v[{40+2*i}:{41+2*i}], v4, s[8:11], s37 offen")
        a(f"buffer_load_dwordx2 v[{56+2*i}:{57+2*i}], v5, s[12:15], 0 offen offset:{2048*i if 2048*i < 4096 else 0}" if i < 2 else
          f"s_mov_b32 s38, {2048*i}\nbuffer_load_dwordx2 v[{56+2*i}:{57+2*i}], v5, s[12:15], s38 offen")
    a(f"""
    v_mov_b32 v8, 0
    v_mov_b32 v9, 0
    v_mov_b32 v10, 0
    v_mov_b32 v11, 0
    v_add_u32 v6, s25, v3
    s_mov_b64 exec, 0x3ffff
    ds_write_b128 v6, v[8:11] offset:{7*CSTR-32}
    s_mov_b64 exec, -1
    s_mov_b32 s22, 0xffff0000
    v_lshlrev_b32 v7, 1, v0             ; t*2
    """.replace("s22", "s39"))
    for i in range(8):
        a(f"s_waitcnt vmcnt({2*(7-i)})")
        x0, x1, m, s = 40 + 2 * i, 41 + 2 * i, 56 + 2 * i, 57 + 2 * i
        a(f"""
        v_rcp_f32 v12, v{s}
        v_lshlrev_b32 v16, 16, v{x0}
        v_and_b32 v17, s39, v{x0}
        v_lshlrev_b32 v18, 16, v{x1}
        v_and_b32 v19, s39, v{x1}
        v_sub_f32 v16, v16, v{m}
        v_sub_f32 v17, v17, v{m}
        v_sub_f32 v18, v18, v{m}
        v_sub_f32 v19, v19, v{m}
        v_cvt_pk_bf16_f32 v20, v16, v17
        v_cvt_pk_bf16_f32 v21, v18, v19
        v_lshlrev_b32 v16, 16, v20
        v_and_b32 v17, s39, v20
        v_lshlrev_b32 v18, 16, v21
        v_and_b32 v19, s39, v21
        """)
        for c in range(4):
            a(f"v_mul_f32 v{20+c}, v{16+c}, v12")
        for c in range(4):
            a(f"v_fma_f32 v{24+c}, -v{20+c}, v{s}, v{16+c}")
        for c in range(4):
            a(f"v_fma_f32 v{20+c}, v{24+c}, v12, v{20+c}")
        a(f"""
        v_cvt_pk_bf16_f32 v{72+2*i}, v20, v21
        v_cvt_pk_bf16_f32 v{73+2*i}, v22, v23
        v_lshlrev_b32 v16, 16, v{72+2*i}
        v_and_b32 v17, s39, v{72+2*i}
        v_lshlrev_b32 v18, 16, v{73+2*i}
        v_and_b32 v19, s39, v{73+2*i}
        v_cvt_pk_f16_f32 v20, v16, v17
        v_cvt_pk_f16_f32 v21, v18, v19
        """)
        base = 7 * CSTR + 256 + 512 * i
        a(f"v_add_u32 v13, {2*CH_STRIDE}, v7")
        a(f"ds_write_b16 v7, v20 offset:{base}")
        a(f"ds_write_b16_d16_hi v7, v20 offset:{base + CH_STRIDE}" if base + CH_STRIDE < 65536 else
          f"v_add_u32 v14, {CH_STRIDE}, v7\nds_write_b16_d16_hi v14, v20 offset:{base}")
        a(f"ds_write_b16 v13, v21 offset:{base}")
        a(f"v_add_u32 v14, {CH_STRIDE}, v13\nds_write_b16_d16_hi v14, v21 offset:{base}")
    a("s_waitcnt lgkmcnt(0)")
    a("s_barrier")
    for k in range(5):
        if k == 4:
            a("s_mov_b64 exec, 0xffff")
        a(f"ds_read_b128 v[8:11], v6 offset:{7*CSTR - 16 + 1024*k}")
        a(f"ds_read_b128 v[12:15], v6 offset:{7*CSTR + 1024*k}")
        a("s_waitcnt lgkmcnt(0)")
        for p in range(7):
            s = p + 1
            dst = 16 + 4 * (p % 4)
            if s % 2 == 1:
                j0 = s // 2
                for q in range(4):
                    a(f"v_alignbit_b32 v{dst+q}, v{8+j0+q+1}, v{8+j0+q}, 16")
                a(f"ds_write_b128 v6, v[{dst}:{dst+3}] offset:{p*CSTR + 1024*k}")
            else:
                j0 = s // 2
                if j0 % 2 == 0:
                    a(f"ds_write_b128 v6, v[{8+j0}:{8+j0+3}] offset:{p*CSTR + 1024*k}")
                else:
                    for q in range(4):
                        a(f"v_mov_b32 v{dst+q}, v{8+j0+q}")
                    a(f"ds_write_b128 v6, v[{dst}:{dst+3}] offset:{p*CSTR + 1024*k}")
        a("s_waitcnt lgkmcnt(0)")
    a("s_mov_b64 exec, -1")
    a(f"""
    v_and_b32 v8, 15, v2                ; n / j
    v_lshrrev_b32 v9, 4, v2             ; g
    v_sub_u32 v10, v9, v8
    v_lshlrev_b32 v10, 4, v10
    v_add_u32 v10, 240, v10
    v_add_u32 v10, s36, v10             ; v10 = kaddr
    ; u frag: p = (n&3) + 4*(n>>3); q = ((n>>2)^(n>>3))&1
    v_and_b32 v11, 3, v8
    v_lshrrev_b32 v12, 3, v8
    v_lshl_add_u32 v11, v12, 2, v11     ; p
    v_lshrrev_b32 v13, 2, v8
    v_xor_b32 v13, v13, v12
    v_and_b32 v13, 1, v13               ; q
    v_mul_u32_u24 v11, {CSTR}, v11
    v_lshl_add_u32 v11, v13, 8, v11
    v_lshl_add_u32 v11, v9, 4, v11
    v_add_u32 v11, s25, v11             ; v11 = uaddr
    """)
    ACC = 96
    FR = [128, 192]
    for r in range(32):
        a(f"v_mov_b32 v{ACC+r}, 0")
    a("s_waitcnt vmcnt(0)")
    def reads(e, buf):
        b = FR[buf]
        for g in range(8):
            a(f"ds_read_b128 v[{b+4*g}:{b+4*g+3}], v10 offset:{512*(7-g) + 64*(7-e)}")
            a(f"ds_read_b128 v[{b+32+4*g}:{b+32+4*g+3}], v11 offset:{512*g + 64*(7-e)}")
    reads(0, 0)
    for e in range(8):
        buf = e & 1
        b = FR[buf]
        a("s_waitcnt lgkmcnt(0)")
        if e < 7:
            reads(e + 1, buf ^ 1)
        for tau in range(8):
            for gam in range(tau + 1):
                beta = tau - gam
                a(f"v_mfma_f32_16x16x32_f16 v[{ACC+4*tau}:{ACC+4*tau+3}], v[{b+32+4*beta}:{b+32+4*beta+3}], v[{b+4*gam}:{b+4*gam+3}], v[{ACC+4*tau}:{ACC+4*tau+3}]")
    a(f"""
    s_cmp_eq_u32 s3, 1
    s_cselect_b32 s32, s33, s32
    s_cmp_eq_u32 s3, 2
    s_cselect_b32 s32, s34, s32
    s_cmp_eq_u32 s3, 3
    s_cselect_b32 s32, s35, s32
    ; t = 256 tau + 128 q + 8 j + 4*(g>>1) ; q = (g ^ (g>>1)) & 1
    v_lshrrev_b32 v12, 1, v9
    v_xor_b32 v13, v9, v12
    v_and_b32 v13, 1, v13
    v_lshlrev_b32 v14, 4, v8            ; 8j*2
    v_lshl_add_u32 v14, v13, 8, v14     ; +128q*2
    v_lshl_add_u32 v14, v12, 3, v14     ; +4*(g>>1)*2
    v_add_u32 v14, s25, v14
    s_nop 7
    """)
    for tau in range(8):
        for r in range(4):
            a(f"v_mul_f32 v{ACC+4*tau+r}, s32, v{ACC+4*tau+r}")
        a(f"v_cvt_pk_bf16_f32 v{16+2*tau}, v{ACC+4*tau}, v{ACC+4*tau+1}")
        a(f"v_cvt_pk_bf16_f32 v{17+2*tau}, v{ACC+4*tau+2}, v{ACC+4*tau+3}")
        a(f"ds_write_b64 v14, v[{16+2*tau}:{17+2*tau}] offset:{512*tau}")
    a("s_waitcnt lgkmcnt(0)")
    a("s_barrier")
    a(f"""
    s_lshl_b32 s40, s30, 16
    s_and_b32 s41, s30, 0xffff0000
    s_lshl_b32 s42, s31, 16
    s_and_b32 s43, s31, 0xffff0000
    v_add_u32 v13, {CH_STRIDE}, v7
    v_add_u32 v14, {2*CH_STRIDE}, v7
    v_add_u32 v15, {3*CH_STRIDE}, v7
    """)
    for i in range(8):
        yb = 128 + 4 * i
        a(f"ds_read_u16 v{yb}, v7 offset:{512*i}")
        a(f"ds_read_u16 v{yb+1}, v13 offset:{512*i}")
        a(f"ds_read_u16 v{yb+2}, v14 offset:{512*i}")
        a(f"ds_read_u16 v{yb+3}, v15 offset:{512*i}")
    for i in range(8):
        yb = 128 + 4 * i
        x0, x1, u0, u1 = 40 + 2 * i, 41 + 2 * i, 72 + 2 * i, 73 + 2 * i
        a(f"s_waitcnt lgkmcnt({min(15, 4*(7-i))})")
        a(f"""
        v_lshlrev_b32 v16, 16, v{u0}
        v_and_b32 v17, s39, v{u0}
        v_lshlrev_b32 v18, 16, v{u1}
        v_and_b32 v19, s39, v{u1}
        v_mul_f32 v16, s40, v16
        v_mul_f32 v17, s41, v17
        v_mul_f32 v18, s42, v18
        v_mul_f32 v19, s43, v19
        v_cvt_pk_bf16_f32 v20, v16, v17
        v_cvt_pk_bf16_f32 v21, v18, v19
        v_lshlrev_b32 v16, 16, v20
        v_and_b32 v17, s39, v20
        v_lshlrev_b32 v18, 16, v21
        v_and_b32 v19, s39, v21
        v_lshlrev_b32 v{yb}, 16, v{yb}
        v_lshlrev_b32 v{yb+1}, 16, v{yb+1}
        v_lshlrev_b32 v{yb+2}, 16, v{yb+2}
        v_lshlrev_b32 v{yb+3}, 16, v{yb+3}
        v_add_f32 v16, v16, v{yb}
        v_add_f32 v17, v17, v{yb+1}
        v_add_f32 v18, v18, v{yb+2}
        v_add_f32 v19, v19, v{yb+3}
        v_cvt_pk_bf16_f32 v20, v16, v17
        v_cvt_pk_bf16_f32 v21, v18, v19
        v_lshlrev_b32 v16, 16, v20
        v_and_b32 v17, s39, v20
        v_lshlrev_b32 v18, 16, v21
        v_and_b32 v19, s39, v21
        v_lshlrev_b32 v20, 16, v{x0}
        v_and_b32 v21, s39, v{x0}
        v_lshlrev_b32 v22, 16, v{x1}
        v_and_b32 v23, s39, v{x1}
        v_add_f32 v16, v16, v20
        v_add_f32 v17, v17, v21
        v_add_f32 v18, v18, v22
        v_add_f32 v19, v19, v23
        v_cvt_pk_bf16_f32 v{yb}, v16, v17
        v_cvt_pk_bf16_f32 v{yb+1}, v18, v19
        s_mov_b32 s37, {256*1152*i}
        buffer_store_dwordx2 v[{yb}:{yb+1}], v4, s[20:23], s37 offen
        """)
    a.label(f"{name}_end")
    a("s_endpgm")
    return kernel_desc(name, 256, sgpr=64)
```

```python
from gen_common import *
import math

G1_SLOT = 16384 + 2 * 9216
G1_LDS = 4 * G1_SLOT
NST = 18

def gemm1_kernel(a, name, exact_round=True):
    kernel_header(a, name)
    a("s_cmp_ge_u32 s2, 256")
    a(f"s_cbranch_scc1 {name}_end")
    a(f"s_load_dwordx4 s[4:7], s[0:1], {ARG['w1']}")
    a(f"s_load_dwordx2 s[8:9], s[0:1], {ARG['ws']}")
    a("""
    v_lshrrev_b32 v2, 6, v0
    v_and_b32 v1, 63, v0                ; lane
    s_nop 0
    v_readfirstlane_b32 s3, v2          ; wave
    s_and_b32 s10, s2, 7
    s_lshr_b32 s11, s2, 3
    s_and_b32 s12, s11, 3
    s_lshl_b32 s10, s10, 2
    s_add_u32 s10, s10, s12             ; cb
    s_lshr_b32 s11, s11, 2              ; rb
    s_and_b32 s13, s3, 3                ; wm
    s_waitcnt lgkmcnt(0)
    """)
    srd(a, 16, 8, 2048 * 1152, WS_HN)
    srd(a, 24, 8, 2048 * 9216, WS_HH)
    a("""
    s_cmp_ge_u32 s3, 6
    s_cselect_b32 s20, s6, s4
    s_cselect_b32 s21, s7, s5
    s_and_b32 s21, s21, 0xffff
    """)
    a(f"s_mov_b32 s22, {576*9216}")
    a("s_mov_b32 s23, 0x00020000")
    a(f"""
    v_and_b32 v3, 15, v1                ; l&15
    v_lshrrev_b32 v4, 4, v1             ; g
    ; X: (64wm + (l&15))*64 + (g ^ f((l>>2)&3))*16 ; f(q) = (4-q)&3
    v_bfe_u32 v5, v1, 2, 2
    v_sub_u32 v5, 4, v5
    v_and_b32 v5, 3, v5
    v_xor_b32 v5, v5, v4
    v_lshlrev_b32 v5, 4, v5
    v_lshl_add_u32 v5, v3, 6, v5
    s_lshl_b32 s14, s13, 12
    v_add_u32 v4, s14, v5               ; placeholder
    v_mov_b32 v6, v4                    ; vXa0 = v6
    v_add_u32 v7, {2*G1_SLOT}, v6       ; vXa1 = v7
    ; W: (4g + r)*288 + c*8 ; r = (l&15)>>2 ; c = l&3  => (l>>2)*288 + (l&3)*8
    v_lshrrev_b32 v4, 2, v1
    v_mul_u32_u24 v8, 288, v4
    v_and_b32 v5, 3, v1
    v_lshl_add_u32 v8, v5, 3, v8        ; vWa0 = v8
    v_add_u32 v9, {2*G1_SLOT}, v8       ; vWa1 = v9
    """)
    a("s_cmp_ge_u32 s3, 4")
    a(f"s_cbranch_scc1 {name}_p1")
    gemm1_path(a, name, 0, exact_round)
    a(f"s_branch {name}_end")
    a.label(f"{name}_p1")
    gemm1_path(a, name, 1, exact_round)
    a.label(f"{name}_end")
    a("s_endpgm")
    return kernel_desc(name, 256, sgpr=64)

def gemm1_path(a, name, wn, exact_round):
    NT = 5 if wn == 0 else 4
    T0 = 0 if wn == 0 else 5
    VX = [16, 32]
    VW = 48
    ACC = 88
    nd = 4 if wn == 0 else 5
    def acc(i, j, mat):
        return ACC + ((i * NT + j) * 2 + mat) * 4
    if wn == 0:
        a(f"""
        v_lshrrev_b32 v4, 4, v1
        v_sub_u32 v4, 4, v4
        v_and_b32 v4, 3, v4
        v_and_b32 v5, 3, v1
        v_xor_b32 v4, v4, v5
        v_lshrrev_b32 v5, 2, v1
        s_lshl_b32 s14, s11, 8
        s_lshl_b32 s15, s13, 6
        s_add_u32 s14, s14, s15
        v_add_u32 v5, s14, v5
        v_mul_u32_u24 v5, 1152, v5
        v_lshl_add_u32 v10, v4, 4, v5       ; voffA = v10
        s_lshl_b32 s30, s13, 12
        """)
    else:
        a(f"""
        s_and_b32 s14, s3, 1                ; hv
        s_mul_i32 s15, s14, {16*9216}
        s_mul_i32 s31, s10, 288
        s_add_u32 s15, s15, s31
        s_mov_b32 s32, {(1<<32)//18 + 1}
        s_lshr_b32 s33, s13, 1              ; matrix
        s_mul_i32 s30, s33, 9216
        s_mul_i32 s33, s14, 4608
        s_add_u32 s30, s30, s33
        s_add_u32 s30, s30, 16384
        """)
        for i in range(5):
            a(f"""
            v_add_u32 v4, {64*i}, v1
            v_mul_hi_u32 v5, v4, s32            ; row
            v_mul_u32_u24 v15, 18, v5
            v_sub_u32 v4, v4, v15               ; c
            v_mul_u32_u24 v5, 9216, v5
            v_lshl_add_u32 v{10+i}, v4, 4, v5
            v_add_u32 v{10+i}, s15, v{10+i}
            """)
    def dma(s):
        slot = s & 3
        if wn == 0:
            for i in range(4):
                a(f"s_add_u32 m0, s30, {slot*G1_SLOT + 1024*i}")
                a(f"s_mov_b32 s34, {64*s + i*16*1152}")
                a(f"buffer_load_dwordx4 v10, s[16:19], s34 offen lds")
        else:
            a(f"s_mov_b32 s34, {s*32*9216}")
            for i in range(5):
                if i == 4:
                    a("s_mov_b64 exec, 0xffffffff")
                a(f"s_add_u32 m0, s30, {slot*G1_SLOT + 1024*i}")
                a("s_nop 0")
                a(f"buffer_load_dwordx4 v{10+i}, s[20:23], s34 offen lds")
            a("s_mov_b64 exec, -1")
    def xreads(s):
        slot = s & 3
        base = "v6" if slot < 2 else "v7"
        off = (slot & 1) * G1_SLOT
        b = VX[s & 1]
        for i in range(4):
            a(f"ds_read_b128 v[{b+4*i}:{b+4*i+3}], {base} offset:{off + 1024*i}")
    def wreads(s, j):
        slot = s & 3
        base = "v8" if slot < 2 else "v9"
        off = (slot & 1) * G1_SLOT + 16384
        for mat in range(2):
            r = VW + (j * 2 + mat) * 4
            o = off + mat * 9216 + (T0 + j) * 32
            a(f"ds_read_b64_tr_b16 v[{r}:{r+1}], {base} offset:{o}")
            a(f"ds_read_b64_tr_b16 v[{r+2}:{r+3}], {base} offset:{o + 16*288}")
    dma(0); dma(1); dma(2)
    for r in range(ACC, ACC + 32 * NT):
        a(f"v_mov_b32 v{r}, 0")
    a(f"s_waitcnt vmcnt({2*nd})")
    a("s_barrier")
    xreads(0)
    for j in range(NT):
        wreads(0, j)
    for s in range(NST):
        if s + 1 < NST:
            rem = min(NST - 1, s + 2) - (s + 1)
            a(f"s_waitcnt vmcnt({rem*nd})")
            a("s_barrier")
            if s + 3 < NST:
                dma(s + 3)
            xreads(s + 1)
        b = VX[s & 1]
        for j in range(NT):
            if s + 1 < NST:
                a(f"s_waitcnt lgkmcnt({min(15, 4*NT)})")
            else:
                a(f"s_waitcnt lgkmcnt({4*(NT-1-j)})" if 4*(NT-1-j) <= 15 else "s_waitcnt lgkmcnt(15)")
            for mat in range(2):
                w = VW + (j * 2 + mat) * 4
                for i in range(4):
                    c = acc(i, j, mat)
                    a(f"v_mfma_f32_16x16x32_bf16 v[{c}:{c+3}], v[{w}:{w+3}], v[{b+4*i}:{b+4*i+3}], v[{c}:{c+3}]")
            if s + 1 < NST:
                wreads(s + 1, j)
    a(f"""
    s_lshl_b32 s14, s11, 8
    s_lshl_b32 s15, s13, 6
    s_add_u32 s14, s14, s15
    v_add_u32 v4, s14, v3
    s_mov_b32 s35, 9216
    v_mul_lo_u32 v4, v4, s35
    v_lshrrev_b32 v5, 4, v1
    v_lshl_add_u32 v4, v5, 4, v4        ; voffset
    s_mul_i32 s36, s10, 9
    s_add_u32 s36, s36, {T0}            ; J0
    s_mov_b32 s37, {f32hex(-math.log2(math.e))}
    s_mov_b32 s38, 0xffff0000
    s_nop 7
    """)
    for j in range(NT):
        a(f"""
        s_add_u32 s39, s36, {j}
        s_lshr_b32 s40, s39, 1
        s_lshl_b32 s40, s40, 6
        s_and_b32 s39, s39, 1
        s_lshl_b32 s39, s39, 3
        s_add_u32 s40, s40, s39
        """)
        for i in range(4):
            g = acc(i, j, 0); u = acc(i, j, 1)
            T = 16 + 16 * (i & 1)
            if exact_round:
                a(f"""
                v_cvt_pk_bf16_f32 v{T}, v{g}, v{g+1}
                v_cvt_pk_bf16_f32 v{T+1}, v{g+2}, v{g+3}
                v_cvt_pk_bf16_f32 v{T+2}, v{u}, v{u+1}
                v_cvt_pk_bf16_f32 v{T+3}, v{u+2}, v{u+3}
                v_lshlrev_b32 v{g}, 16, v{T}
                v_and_b32 v{g+1}, s38, v{T}
                v_lshlrev_b32 v{g+2}, 16, v{T+1}
                v_and_b32 v{g+3}, s38, v{T+1}
                v_lshlrev_b32 v{u}, 16, v{T+2}
                v_and_b32 v{u+1}, s38, v{T+2}
                v_lshlrev_b32 v{u+2}, 16, v{T+3}
                v_and_b32 v{u+3}, s38, v{T+3}
                """)
            for r in range(4):
                a(f"v_mul_f32 v{T+4+r}, s37, v{g+r}")
            for r in range(4):
                a(f"v_exp_f32 v{T+4+r}, v{T+4+r}")
            for r in range(4):
                a(f"v_add_f32 v{T+4+r}, 1.0, v{T+4+r}")
            for r in range(4):
                a(f"v_rcp_f32 v{T+4+r}, v{T+4+r}")
            a("s_nop 0")
            for r in range(4):
                a(f"v_mul_f32 v{T+4+r}, v{g+r}, v{T+4+r}")
            if exact_round:
                a(f"""
                v_cvt_pk_bf16_f32 v{T}, v{T+4}, v{T+5}
                v_cvt_pk_bf16_f32 v{T+1}, v{T+6}, v{T+7}
                v_lshlrev_b32 v{T+4}, 16, v{T}
                v_and_b32 v{T+5}, s38, v{T}
                v_lshlrev_b32 v{T+6}, 16, v{T+1}
                v_and_b32 v{T+7}, s38, v{T+1}
                """)
            for r in range(4):
                a(f"v_mul_f32 v{T+4+r}, v{T+4+r}, v{u+r}")
            a(f"""
            v_cvt_pk_bf16_f32 v{T+8}, v{T+4}, v{T+5}
            v_cvt_pk_bf16_f32 v{T+9}, v{T+6}, v{T+7}
            s_add_u32 s41, s40, {i*16*9216}
            buffer_store_dwordx2 v[{T+8}:{T+9}], v4, s[24:27], s41 offen
            """)
```

```python
from gen_common import *

G2_SLOT = 4096 + 5120
G2_LDS = 163840
NCH = 18

def gemm2_kernel(a, name):
    kernel_header(a, name)
    a("s_cmp_ge_u32 s2, 256")
    a(f"s_cbranch_scc1 {name}_end")
    a(f"s_load_dwordx4 s[4:7], s[0:1], {ARG['w2']}")
    a(f"s_load_dwordx2 s[8:9], s[0:1], {ARG['ws']}")
    a("""
    v_lshrrev_b32 v2, 6, v0
    v_and_b32 v1, 63, v0                ; lane
    s_nop 0
    v_readfirstlane_b32 s3, v2          ; wave
    s_and_b32 s10, s2, 7
    s_lshr_b32 s11, s2, 3
    s_and_b32 s12, s11, 7               ; cbk
    s_lshr_b32 s11, s11, 3
    s_lshl_b32 s10, s10, 2
    s_add_u32 s11, s11, s10             ; rbk
    s_waitcnt lgkmcnt(0)
    """)
    srd(a, 16, 8, 2048 * 9216, WS_HH)
    srd(a, 20, 4, 4608 * 1152)
    srd(a, 24, 6, 2048 * 1152)
    srd(a, 28, 8, 2048 * 1152, WS_H)
    a(f"""
    s_mul_i32 s46, s3, {2*G2_SLOT}
    v_and_b32 v3, 15, v1
    v_lshrrev_b32 v4, 4, v1             ; g
    v_bfe_u32 v5, v1, 2, 2
    v_sub_u32 v5, 4, v5
    v_and_b32 v5, 3, v5
    v_xor_b32 v5, v5, v4
    v_lshlrev_b32 v5, 4, v5
    v_lshl_add_u32 v5, v3, 6, v5
    v_add_u32 v6, s46, v5               ; vXa
    v_lshrrev_b32 v4, 2, v1
    v_mul_u32_u24 v8, 160, v4
    v_and_b32 v5, 3, v1
    v_lshl_add_u32 v8, v5, 3, v8
    v_add_u32 v8, s46, v8               ; vWa
    v_lshrrev_b32 v4, 4, v1
    v_sub_u32 v4, 4, v4
    v_and_b32 v4, 3, v4
    v_and_b32 v5, 3, v1
    v_xor_b32 v4, v4, v5
    v_lshrrev_b32 v5, 2, v1
    s_lshl_b32 s14, s11, 6
    v_add_u32 v5, s14, v5
    s_mov_b32 s15, 9216
    v_mul_lo_u32 v5, v5, s15
    v_lshl_add_u32 v9, v4, 4, v5        ; voffA
    s_mul_i32 s15, s12, 144
    s_mov_b32 s32, {(1<<32)//10 + 1}
    s_lshl_b32 s33, s3, 6
    s_mul_i32 s34, s3, {32*1152}
    """)
    for i in range(5):
        a(f"""
        v_add_u32 v4, {64*i}, v1
        v_mul_hi_u32 v5, v4, s32
        v_mul_u32_u24 v15, 10, v5
        v_sub_u32 v4, v4, v15
        v_mul_u32_u24 v5, 1152, v5
        v_lshl_add_u32 v{10+i}, v4, 4, v5
        v_add_u32 v{10+i}, s15, v{10+i}
        """)
    VX, VW, ACC = 16, 32, 64
    def dma(i):
        slot = i & 1
        for q in range(4):
            a(f"s_add_u32 m0, s46, {slot*G2_SLOT + 1024*q}")
            a(f"s_add_u32 s35, s33, {i*512 + q*16*9216}")
            a(f"buffer_load_dwordx4 v9, s[16:19], s35 offen lds")
        a(f"s_add_u32 s35, s34, {i*8*32*1152}")
        for q in range(5):
            a(f"s_add_u32 m0, s46, {slot*G2_SLOT + 4096 + 1024*q}")
            a("s_nop 0")
            a(f"buffer_load_dwordx4 v{10+q}, s[20:23], s35 offen lds")
    dma(0); dma(1)
    for r in range(ACC, ACC + 80):
        a(f"v_mov_b32 v{r}, 0")
    for i in range(NCH):
        slot = i & 1
        a(f"s_waitcnt vmcnt({9 if i + 1 < NCH else 0})")
        for q in range(4):
            a(f"ds_read_b128 v[{VX+4*q}:{VX+4*q+3}], v6 offset:{slot*G2_SLOT + 1024*q}")
        for n in range(5):
            o = slot * G2_SLOT + 4096 + n * 32
            a(f"ds_read_b64_tr_b16 v[{VW+4*n}:{VW+4*n+1}], v8 offset:{o}")
            a(f"ds_read_b64_tr_b16 v[{VW+4*n+2}:{VW+4*n+3}], v8 offset:{o + 16*160}")
        a("s_waitcnt lgkmcnt(0)")
        if i + 2 < NCH:
            dma(i + 2)
        for n in range(5):
            for q in range(4):
                c = ACC + (q * 5 + n) * 4
                a(f"v_mfma_f32_16x16x32_bf16 v[{c}:{c+3}], v[{VW+4*n}:{VW+4*n+3}], v[{VX+4*q}:{VX+4*q+3}], v[{c}:{c+3}]")
    a(f"""
    s_mul_i32 s46, s3, 20480
    v_lshl_add_u32 v4, v1, 4, s46
    s_nop 7
    s_barrier
    """)
    for t in range(20):
        c = ACC + 4 * t
        a(f"ds_write_b128 v4, v[{c}:{c+3}] offset:{1024*t}")
    a("s_waitcnt lgkmcnt(0)")
    a("s_barrier")
    a(f"""
    v_lshlrev_b32 v4, 4, v0             ; tid*16
    v_add_u32 v5, {4*20480}, v4
    s_mov_b32 s38, 0xffff0000
    """)
    for k in range(3):
        if k == 2:
            a("s_cmp_ge_u32 s3, 4")
            a(f"s_cbranch_scc1 {name}_end")
        for w in range(8):
            base = "v4" if w < 4 else "v5"
            a(f"ds_read_b128 v[{16+4*w}:{19+4*w}], {base} offset:{(w&3)*20480 + 8192*k}" if (w&3)*20480 + 8192*k < 65536 else
              f"v_add_u32 v7, {8192*k}, {base}\nds_read_b128 v[{16+4*w}:{19+4*w}], v7 offset:{(w&3)*20480}")
        a(f"""
        s_add_u32 s39, s3, {8*k}
        s_mul_i32 s40, s39, 52
        s_lshr_b32 s40, s40, 8              ; q = T/5
        s_mul_i32 s41, s40, 5
        s_sub_u32 s41, s39, s41             ; n
        s_lshl_b32 s42, s11, 6
        s_lshl_b32 s40, s40, 4
        s_add_u32 s42, s42, s40
        v_add_u32 v7, s42, v3
        v_mul_u32_u24 v7, 1152, v7
        s_mul_i32 s42, s12, 144
        s_lshl_b32 s43, s41, 5
        s_add_u32 s42, s42, s43
        v_lshrrev_b32 v9, 4, v1
        v_lshl_add_u32 v7, v9, 3, v7
        v_add_u32 v7, s42, v7
        s_lshl_b32 s43, s41, 4
        v_lshl_add_u32 v9, v9, 2, s43
        v_cmp_gt_u32 vcc, 72, v9
        s_and_saveexec_b64 s[44:45], vcc
        buffer_load_dwordx2 v[10:11], v7, s[28:31], 0 offen
        s_waitcnt lgkmcnt(0)
        """)
        for r in range(4):
            a(f"v_add_f32 v{16+r}, v{16+r}, v{20+r}")
            a(f"v_add_f32 v{24+r}, v{24+r}, v{28+r}")
            a(f"v_add_f32 v{32+r}, v{32+r}, v{36+r}")
            a(f"v_add_f32 v{40+r}, v{40+r}, v{44+r}")
        for r in range(4):
            a(f"v_add_f32 v{16+r}, v{16+r}, v{24+r}")
            a(f"v_add_f32 v{32+r}, v{32+r}, v{40+r}")
        for r in range(4):
            a(f"v_add_f32 v{16+r}, v{16+r}, v{32+r}")
        a(f"""
        v_cvt_pk_bf16_f32 v20, v16, v17
        v_cvt_pk_bf16_f32 v21, v18, v19
        v_lshlrev_b32 v16, 16, v20
        v_and_b32 v17, s38, v20
        v_lshlrev_b32 v18, 16, v21
        v_and_b32 v19, s38, v21
        s_waitcnt vmcnt(0)
        v_lshlrev_b32 v20, 16, v10
        v_and_b32 v21, s38, v10
        v_lshlrev_b32 v22, 16, v11
        v_and_b32 v23, s38, v11
        v_add_f32 v16, v16, v20
        v_add_f32 v17, v17, v21
        v_add_f32 v18, v18, v22
        v_add_f32 v19, v19, v23
        v_cvt_pk_bf16_f32 v12, v16, v17
        v_cvt_pk_bf16_f32 v13, v18, v19
        buffer_store_dwordx2 v[12:13], v7, s[24:27], 0 offen
        s_mov_b64 exec, -1
        """)
    a.label(f"{name}_end")
    a("s_endpgm")
    return kernel_desc(name, 144, sgpr=64)
```

```python
from gen_common import *
import math

KG_LDS = 22784

def kgen_body(a, name, sblk):
    a("s_load_dwordx8 s[8:15], s[0:1], 8")
    a("s_load_dwordx4 s[16:19], s[0:1], 40")
    a("s_load_dwordx2 s[20:21], s[0:1], 56")
    a(f"s_load_dwordx2 s[22:23], s[0:1], {ARG['ws']}")
    a(f"s_mov_b32 s30, {f32hex(math.log2(math.e))}")
    a(f"s_mov_b32 s31, {f32hex(1.0/(2*math.pi))}")
    a(f"s_mov_b32 s32, {f32hex(2048.0)}")
    a(f"""
    v_lshrrev_b32 v1, 6, v0             ; wave
    v_and_b32 v2, 63, v0                ; lane
    v_and_b32 v3, 15, v0                ; l&15
    v_bfe_u32 v4, v0, 4, 2              ; g = (l>>4)&3
    s_lshl_b32 s3, s{sblk}, 8           ; d*256 bytes
    v_lshl_add_u32 v5, v0, 1, s3
    s_lshl_b32 s4, s{sblk}, 1
    v_mov_b32 v6, s4
    v_mov_b32 v28, 0                    ; l=2048 term
    v_cmp_gt_u32 vcc, 128, v0
    s_and_saveexec_b64 s[24:25], vcc
    s_cbranch_execz {name}_p0skip
    s_waitcnt lgkmcnt(0)
    global_load_ushort v10, v5, s[8:9]
    global_load_ushort v11, v5, s[10:11]
    global_load_ushort v12, v5, s[12:13]
    global_load_ushort v13, v5, s[14:15]
    global_load_ushort v14, v5, s[16:17]
    global_load_ushort v15, v5, s[18:19]
    global_load_ushort v16, v6, s[20:21]
    s_waitcnt vmcnt(0)
    v_lshlrev_b32 v10, 16, v10
    v_lshlrev_b32 v11, 16, v11
    v_lshlrev_b32 v12, 16, v12
    v_lshlrev_b32 v13, 16, v13
    v_lshlrev_b32 v14, 16, v14
    v_lshlrev_b32 v15, 16, v15
    v_lshlrev_b32 v16, 16, v16
    v_mul_f32 v16, s30, v16
    v_exp_f32 v16, v16
    s_nop 0
    v_cvt_pk_bf16_f32 v16, v16, v16
    v_lshlrev_b32 v16, 16, v16
    v_mul_f32 v10, v16, v10             ; a
    v_mul_f32 v11, v16, v11             ; b
    v_mul_f32 v12, v16, v12             ; dBr
    v_mul_f32 v13, v16, v13             ; dBi
    v_mul_f32 v20, s30, v10             ; a'
    v_mul_f32 v21, s31, v11             ; b'
    v_mul_f32 v17, v15, v13             ; Ci*dBi
    v_fma_f32 v22, v14, v12, -v17       ; Wr
    v_mul_f32 v17, v15, v12             ; Ci*dBr
    v_fma_f32 v23, v14, v13, v17        ; Wi
    v_lshlrev_b32 v7, 4, v0
    ds_write_b128 v7, v[20:23]
    ; l = 2048 term
    v_mul_f32 v24, s32, v20
    v_exp_f32 v24, v24
    v_mul_f32 v25, s32, v21
    v_fract_f32 v25, v25
    v_cos_f32 v26, v25
    v_sin_f32 v27, v25
    s_nop 0
    v_mul_f32 v27, v23, v27
    v_fma_f32 v26, v22, v26, -v27
    v_mul_f32 v28, v24, v26
    """)
    a.label(f"{name}_p0skip")
    a(f"""
    s_mov_b64 exec, -1
    s_nop 1
    v_add_f32_dpp v29, v28, v28 quad_perm:[1,0,3,2] row_mask:0xf bank_mask:0xf
    s_nop 1
    v_add_f32_dpp v28, v29, v29 quad_perm:[2,3,0,1] row_mask:0xf bank_mask:0xf
    s_nop 1
    v_add_f32_dpp v29, v28, v28 row_half_mirror row_mask:0xf bank_mask:0xf
    s_nop 1
    v_add_f32_dpp v28, v29, v29 row_mirror row_mask:0xf bank_mask:0xf
    s_nop 1
    v_readlane_b32 s26, v28, 0
    v_readlane_b32 s27, v28, 16
    v_readlane_b32 s28, v28, 32
    v_readlane_b32 s29, v28, 48
    s_nop 3
    v_mov_b32 v28, s26
    v_add_f32 v28, s27, v28
    v_add_f32 v28, s28, v28
    v_add_f32 v28, s29, v28
    v_mul_u32_u24 v8, 5120, v1          ; wave partial base
    v_add_u32 v8, 2048, v8
    ds_write_b32 v8, v28 offset:{1152*4}
    ; params read address: (32w + g)*16
    v_lshlrev_b32 v9, 9, v1
    v_lshl_add_u32 v9, v4, 4, v9
    v_cvt_f32_u32 v31, v3               ; lj
    v_mul_f32 v30, 16.0, v31            ; li
    """.replace("16.0", "0x41800000"))
    for r in range(4):
        for k in range(4):
            a(f"v_mov_b32 v{60+4*r+k}, 0")
    a("s_waitcnt lgkmcnt(0)")
    a("s_barrier")
    for G in range(8):
        a(f"ds_read_b128 v[20:23], v9 offset:{64*G}")
        a("s_waitcnt lgkmcnt(0)")
        a("""
        v_mul_f32 v24, v20, v30
        v_mul_f32 v25, v21, v30
        v_mul_f32 v26, v20, v31
        v_mul_f32 v27, v21, v31
        v_exp_f32 v24, v24
        v_fract_f32 v25, v25
        v_exp_f32 v26, v26
        v_fract_f32 v27, v27
        v_cos_f32 v32, v25
        v_sin_f32 v33, v25
        v_cos_f32 v40, v27
        v_sin_f32 v41, v27
        s_nop 0
        v_mul_f32 v32, v24, v32
        v_mul_f32 v33, v24, v33
        v_mul_f32 v40, v26, v40
        v_mul_f32 v41, v26, v41
        """)
        for r in range(4):
            er, ei = 32 + 2 * r, 33 + 2 * r
            qr, qi = 40 + 2 * r, 41 + 2 * r
            pr, pi = 50 + 2 * r, 51 + 2 * r
            if r > 0:
                a(f"""
                v_mul_f32 v24, v{ei-2}, v{ei-2}
                v_mul_f32 v25, v{qi-2}, v{qi-2}
                v_add_f32 v26, v{er-2}, v{er-2}
                v_add_f32 v27, v{qr-2}, v{qr-2}
                v_fma_f32 v{er}, v{er-2}, v{er-2}, -v24
                v_mul_f32 v{ei}, v26, v{ei-2}
                v_fma_f32 v{qr}, v{qr-2}, v{qr-2}, -v25
                v_mul_f32 v{qi}, v27, v{qi-2}
                """)
            a(f"""
            v_mul_f32 v24, v23, v{ei}
            v_mul_f32 v25, v23, v{er}
            v_fma_f32 v{pr}, v22, v{er}, -v24
            v_fma_f32 v{pi}, -v22, v{ei}, -v25
            """)
        a("s_nop 1")
        for r in range(4):
            a(f"v_mfma_f32_16x16x4_f32 v[{60+4*r}:{63+4*r}], v{40+2*r}, v{50+2*r}, v[{60+4*r}:{63+4*r}]")
        for r in range(4):
            a(f"v_mfma_f32_16x16x4_f32 v[{60+4*r}:{63+4*r}], v{41+2*r}, v{51+2*r}, v[{60+4*r}:{63+4*r}]")
    a("""
    v_lshlrev_b32 v10, 6, v3
    v_lshl_add_u32 v10, v4, 4, v10
    v_add_u32 v10, v10, v8
    s_nop 15
    """)
    for r in range(4):
        a(f"ds_write_b128 v10, v[{60+4*r}:{63+4*r}] offset:{1024*r}")
    a("s_waitcnt lgkmcnt(0)")
    a("s_barrier")
    a("v_lshlrev_b32 v11, 3, v0")
    a("v_sub_u32 v11, 2047, v11        ; l for e=0")
    a("s_mov_b32 s33, 0xffffff80")
    for e in range(8):
        a(f"""
        v_subrev_u32 v12, {e}, v11
        v_cvt_f32_u32 v13, v12
        v_cvt_pk_bf16_f32 v13, v13, v13
        v_and_b32 v13, 0xffff, v13
        v_and_b32 v14, s33, v13
        v_add_u32 v13, v13, v14
        v_subrev_u32 v13, 34176, v13
        v_cmp_gt_u32 vcc, 256, v12
        s_nop 1
        v_cndmask_b32 v13, v13, v12, vcc
        v_lshlrev_b32 v13, 2, v13
        ds_read_b32 v{32+4*e}, v13 offset:{2048}
        ds_read_b32 v{33+4*e}, v13 offset:{2048+5120}
        ds_read_b32 v{34+4*e}, v13 offset:{2048+10240}
        ds_read_b32 v{35+4*e}, v13 offset:{2048+15360}
        """)
    a("s_waitcnt lgkmcnt(0)")
    for e in range(8):
        a(f"v_add_f32 v{32+4*e}, v{32+4*e}, v{33+4*e}")
        a(f"v_add_f32 v{34+4*e}, v{34+4*e}, v{35+4*e}")
        a(f"v_add_f32 v{20+e}, v{32+4*e}, v{34+4*e}")
    a("v_max_f32 v12, abs(v20), abs(v21)")
    for e in range(2, 8):
        a(f"v_max_f32 v12, v12, abs(v{20+e})")
    a(f"""
    s_nop 1
    v_max_f32_dpp v13, v12, v12 quad_perm:[1,0,3,2] row_mask:0xf bank_mask:0xf
    s_nop 1
    v_max_f32_dpp v12, v13, v13 quad_perm:[2,3,0,1] row_mask:0xf bank_mask:0xf
    s_nop 1
    v_max_f32_dpp v13, v12, v12 row_half_mirror row_mask:0xf bank_mask:0xf
    s_nop 1
    v_max_f32_dpp v12, v13, v13 row_mirror row_mask:0xf bank_mask:0xf
    v_lshrrev_b32 v14, 4, v0
    v_lshlrev_b32 v14, 2, v14
    ds_write_b32 v14, v12 offset:{22528}
    s_waitcnt lgkmcnt(0)
    s_barrier
    v_lshlrev_b32 v14, 2, v3
    ds_read_b32 v12, v14 offset:{22528}
    s_waitcnt lgkmcnt(0)
    s_nop 1
    v_max_f32_dpp v13, v12, v12 quad_perm:[1,0,3,2] row_mask:0xf bank_mask:0xf
    s_nop 1
    v_max_f32_dpp v12, v13, v13 quad_perm:[2,3,0,1] row_mask:0xf bank_mask:0xf
    s_nop 1
    v_max_f32_dpp v13, v12, v12 row_half_mirror row_mask:0xf bank_mask:0xf
    s_nop 1
    v_max_f32_dpp v12, v13, v13 row_mirror row_mask:0xf bank_mask:0xf
    v_lshrrev_b32 v13, 23, v12
    v_sub_u32 v13, 267, v13
    v_min_u32 v13, 253, v13
    v_max_u32 v13, 1, v13
    v_sub_u32 v14, 254, v13
    v_lshlrev_b32 v13, 23, v13          ; scale
    v_lshlrev_b32 v14, 23, v14
    """)
    for e in range(8):
        a(f"v_mul_f32 v{20+e}, v13, v{20+e}")
    for e in range(4):
        a(f"v_cvt_pk_f16_f32 v{32+e}, v{20+2*e}, v{21+2*e}")
    srd(a, 36, 22, 576 * KROW, WS_KEXP)
    srd(a, 40, 22, 576 * 4, WS_KSCALE)
    a(f"""
    s_mul_i32 s3, s{sblk}, {KROW}
    v_lshl_add_u32 v15, v0, 4, s3
    buffer_store_dwordx4 v[32:35], v15, s[36:39], 0 offen
    v_mov_b32 v36, 0
    v_mov_b32 v37, 0
    v_mov_b32 v38, 0
    v_mov_b32 v39, 0
    v_add_u32 v15, 4096, v15
    s_lshl_b32 s3, s{sblk}, 2
    v_mov_b32 v16, s3
    v_cmp_gt_u32 vcc, 16, v0
    s_and_saveexec_b64 s[24:25], vcc
    s_cbranch_execz {name}_end
    buffer_store_dwordx4 v[36:39], v15, s[36:39], 0 offen
    v_cmp_eq_u32 vcc, 0, v0
    s_and_saveexec_b64 s[24:25], vcc
    buffer_store_dword v14, v16, s[40:43], 0 offen
    """)

def kgen_kernel(a, name):
    kernel_header(a, name)
    a("s_cmp_ge_u32 s2, 576")
    a(f"s_cbranch_scc1 {name}_end")
    kgen_body(a, name, 2)
    a.label(f"{name}_end")
    a("s_endpgm")
    return kernel_desc(name, 80, sgpr=48)
```

```python
from gen_common import *

def ln_body(a, kind, lbl):
    a(f"s_load_dwordx2 s[4:5], s[0:1], {ARG['x']}")
    a(f"s_load_dwordx2 s[6:7], s[0:1], {ARG['ws']}")
    a("""
    v_lshrrev_b32 v1, 3, v0
    v_and_b32 v2, 7, v0
    s_lshl_b32 s3, s2, 3
    v_add_u32 v1, s3, v1
    v_mul_u32_u24 v3, 1152, v1
    v_lshl_add_u32 v3, v2, 4, v3
    s_waitcnt lgkmcnt(0)
    """)
    if kind == 1:
        srd(a, 8, 4, 2048 * 1152)
        srd(a, 12, 6, 2048 * 8, WS_STATS1)
    else:
        srd(a, 8, 6, 2048 * 1152, WS_H)
        srd(a, 12, 6, 2048 * 1152, WS_HN)
    for i in range(9):
        a(f"buffer_load_dwordx4 v[{8+4*i}:{11+4*i}], v3, s[8:11], 0 offen offset:{128*i}")
    a(f"s_mov_b32 s20, {f32hex(1.0/576)}")
    a(f"s_mov_b32 s21, {f32hex(576.0)}")
    a(f"s_mov_b32 s22, 0xffff0000")
    a(f"s_mov_b32 s23, {f32hex(1e-5)}")
    for d in range(36):
        if d % 4 == 0:
            a(f"s_waitcnt vmcnt({8 - d//4})")
        a(f"v_lshlrev_b32 v{44+2*d}, 16, v{8+d}")
        a(f"v_and_b32 v{45+2*d}, s22, v{8+d}")
    for j in range(4):
        a(f"v_add_f32 v{116+j}, v{44+j}, v{48+j}")
    for k in range(8, 72):
        a(f"v_add_f32 v{116+(k&3)}, v{116+(k&3)}, v{44+k}")
    def reduce8(dst):
        a(f"""
        v_add_f32 v116, v116, v117
        v_add_f32 v118, v118, v119
        v_add_f32 v4, v116, v118
        s_nop 1
        v_add_f32_dpp v5, v4, v4 quad_perm:[1,0,3,2] row_mask:0xf bank_mask:0xf
        s_nop 1
        v_add_f32_dpp v4, v5, v5 quad_perm:[2,3,0,1] row_mask:0xf bank_mask:0xf
        s_nop 1
        v_add_f32_dpp v5, v4, v4 row_half_mirror row_mask:0xf bank_mask:0xf
        v_mul_f32 v4, s20, v5
        v_fma_f32 v6, -v4, s21, v5
        v_fma_f32 {dst}, v6, s20, v4
        """)
    reduce8("v120")
    for j in range(4):
        a(f"v_sub_f32 v7, v{44+j}, v120")
        a(f"v_mul_f32 v{116+j}, v7, v7")
    for k in range(4, 72):
        a(f"v_sub_f32 v{122+(k&1)}, v{44+k}, v120")
        a(f"v_fma_f32 v{116+(k&3)}, v{122+(k&1)}, v{122+(k&1)}, v{116+(k&3)}")
    reduce8("v121")
    a("""
    v_cvt_pk_bf16_f32 v4, v120, v121
    v_lshlrev_b32 v120, 16, v4          ; m_b
    v_and_b32 v121, s22, v4             ; v_b
    v_add_f32 v121, s23, v121
    v_cvt_pk_bf16_f32 v4, v121, v121
    v_lshlrev_b32 v121, 16, v4
    v_sqrt_f32 v121, v121
    s_nop 0
    v_cvt_pk_bf16_f32 v4, v121, v121
    v_lshlrev_b32 v121, 16, v4          ; s
    """)
    if kind == 1:
        a(f"""
        v_lshlrev_b32 v3, 3, v1
        v_cmp_eq_u32 vcc, 0, v2
        s_and_saveexec_b64 s[24:25], vcc
        buffer_store_dwordx2 v[120:121], v3, s[12:15], 0 offen
        """)
    else:
        a("""
        v_rcp_f32 v122, v121
        v_lshrrev_b32 v4, 2, v2
        v_lshlrev_b32 v4, 6, v4
        v_and_b32 v5, 1, v2
        v_lshl_add_u32 v4, v5, 5, v4
        v_bfe_u32 v5, v2, 1, 1
        v_lshl_add_u32 v4, v5, 3, v4
        v_mul_u32_u24 v3, 1152, v1
        v_add_u32 v3, v3, v4
        """)
        for d in range(36):
            x0, x1 = 44 + 2 * d, 45 + 2 * d
            a(f"""
            v_sub_f32 v{x0}, v{x0}, v120
            v_sub_f32 v{x1}, v{x1}, v120
            v_cvt_pk_bf16_f32 v4, v{x0}, v{x1}
            v_lshlrev_b32 v{x0}, 16, v4
            v_and_b32 v{x1}, s22, v4
            v_mul_f32 v4, v{x0}, v122
            v_mul_f32 v5, v{x1}, v122
            v_fma_f32 v6, -v4, v121, v{x0}
            v_fma_f32 v7, -v5, v121, v{x1}
            v_fma_f32 v4, v6, v122, v4
            v_fma_f32 v5, v7, v122, v5
            v_cvt_pk_bf16_f32 v{8+d}, v4, v5
            """)
            if d % 4 == 3:
                i = d // 4
                a(f"buffer_store_dwordx2 v[{8+4*i}:{9+4*i}], v3, s[12:15], 0 offen offset:{128*i}")
                a(f"buffer_store_dwordx2 v[{10+4*i}:{11+4*i}], v3, s[12:15], 0 offen offset:{128*i+16}")

def ln_kernel(a, name, kind):
    kernel_header(a, name)
    a("s_cmp_ge_u32 s2, 256")
    a(f"s_cbranch_scc1 {name}_end")
    ln_body(a, kind, name)
    a.label(f"{name}_end")
    a("s_endpgm")
    return kernel_desc(name, 128, sgpr=32)
```

```python
import sys
from gen_common import *
from gen_ln import ln_kernel
from gen_kgen import kgen_kernel, KG_LDS
from gen_conv import conv_kernel, CONV_LDS
from gen_gemm1 import gemm1_kernel, G1_LDS
from gen_gemm2 import gemm2_kernel, G2_LDS

def main(out):
    hdr = open("sequential_preLN__ssm_conv_s4__glu_gated_swiglu__prompt.s.ref").read().split("; Override launch geometry")[0]
    a = Asm()
    descs = []
    launches = [
        ("ln1_kernel", 256, 64, 0),
        ("kgen_kernel", 576, 256, KG_LDS),
        ("conv_kernel", 144, 256, CONV_LDS),
        ("ln2_kernel", 256, 64, 0),
        ("gemm1_kernel", 256, 512, G1_LDS),
        ("gemm2_kernel", 256, 512, G2_LDS),
    ]
    descs.append(ln_kernel(a, "ln1_kernel", 1))
    descs.append(kgen_kernel(a, "kgen_kernel"))
    descs.append(conv_kernel(a, "conv_kernel"))
    descs.append(ln_kernel(a, "ln2_kernel", 2))
    descs.append(gemm1_kernel(a, "gemm1_kernel"))
    descs.append(gemm2_kernel(a, "gemm2_kernel"))
    s = hdr
    for n, g, b, l in launches:
        s += f"; @launch kernel={n} grid=({g},1,1) block=({b},1,1) lds={l}\n"
    s += '.amdgcn_target "amdgcn-amd-amdhsa--gfx950"\n.text\n'
    s += a.text()
    s += '.section .rodata,"a"\n'
    for d in descs:
        s += ".p2align 6\n" + d
    open(out, "w").write(s)
main(sys.argv[1] if len(sys.argv) > 1 else "sequential_preLN__ssm_conv_s4__glu_gated_swiglu__prompt.s")
```

```python
class Asm:
    def __init__(self):
        self.lines = []
    def __call__(self, s):
        for ln in s.strip("\n").split("\n"):
            self.lines.append("    " + ln.strip())
    def label(self, name):
        self.lines.append(name + ":")
    def raw(self, s):
        self.lines.append(s)
    def text(self):
        return "\n".join(self.lines) + "\n"

WS_STATS1 = 0
WS_KSCALE = 0x8000
WS_KEXP   = 0x10000
KROW      = 4352
TS        = 4352
WS_H      = 0x300000
WS_HN     = 0x600000
WS_HH     = 0x900000
WS_W2P    = 0x2800000
WS_UT     = 0x3000000
WS_YT     = 0x3300000
WS_FLG    = 0x3600000
WS_PART   = 0x4000000
WS_END    = 0x5400000

ARG = dict(x=0, A_re=8, A_im=16, B_re=24, B_im=32, C_re=40, C_im=48, log_dt=56, Dskip=64, B_x=72,
           w1=80, w3=88, w2=96, out=104, dbg=112, ws=120)

def kernel_header(a, name):
    a.raw(f".globl {name}")
    a.raw(".p2align 8")
    a.raw(f".type {name},@function")
    a.label(name)

def kernel_desc(name, vgpr, agpr=0, sgpr=102):
    acc = (vgpr + 3) // 4 * 4
    nfv = acc + agpr if agpr else vgpr
    return f""".amdhsa_kernel {name}
  .amdhsa_next_free_vgpr {nfv}
  .amdhsa_next_free_sgpr {sgpr}
  .amdhsa_accum_offset {acc}
  .amdhsa_group_segment_fixed_size 0
  .amdhsa_kernarg_size 128
  .amdhsa_user_sgpr_count 2
  .amdhsa_user_sgpr_kernarg_segment_ptr 1
  .amdhsa_system_sgpr_workgroup_id_x 1
.end_amdhsa_kernel
"""

def srd(a, d, base_lo, nbytes, add=0):
    if add:
        a(f"s_add_u32 s{d}, s{base_lo}, {add}")
        a(f"s_addc_u32 s{d+1}, s{base_lo+1}, 0")
    else:
        a(f"s_mov_b32 s{d}, s{base_lo}")
        a(f"s_mov_b32 s{d+1}, s{base_lo+1}")
    a(f"s_and_b32 s{d+1}, s{d+1}, 0xffff")
    a(f"s_mov_b32 s{d+2}, {nbytes}")
    a(f"s_mov_b32 s{d+3}, 0x00020000")

def f32hex(x):
    import struct
    return "0x%08x" % struct.unpack("<I", struct.pack("<f", x))[0]


WS_STAMP = 0x3800000 - 0
class Stamps:
    def __init__(self, a, enabled, base=60, kid=0, vr=250):
        self.vr = vr; self.a = a; self.on = enabled; self.base = base; self.n = 0; self.kid = kid
    def stamp(self):
        if not self.on: return
        r = self.base + 2 * self.n
        assert r + 1 < 96
        if self.n == 0:
            self.a(f"s_memrealtime s[98:99]")
        self.a(f"s_memtime s[{r}:{r+1}]")
        self.n += 1
    def dump(self, ws_lo, wave_sgpr, nwaves):
        if not self.on: return
        a = self.a
        a("s_memrealtime s[96:97]")
        a("s_waitcnt lgkmcnt(0)")
        a("s_mov_b64 exec, -1")
        srd(a, 56, ws_lo, 1 << 20, WS_STAMP + self.kid * (1 << 20))
        a(f"s_mul_i32 s55, s2, {nwaves}")
        a(f"s_add_u32 s55, s55, s{wave_sgpr}")
        a("s_lshl_b32 s55, s55, 7")
        a(f"v_mov_b32 v{self.vr}, 0")
        for i in range(self.n):
            a(f"v_writelane_b32 v{self.vr}, s{self.base + 2*i}, {i}")
        a(f"v_writelane_b32 v{self.vr}, s98, 30")
        a(f"v_writelane_b32 v{self.vr}, s96, 31")
        a(f"v_mbcnt_lo_u32_b32 v{self.vr+1}, -1, 0")
        a(f"v_mbcnt_hi_u32_b32 v{self.vr+1}, -1, v{self.vr+1}")
        a(f"v_lshlrev_b32 v{self.vr+1}, 2, v{self.vr+1}")
        a("s_mov_b64 exec, 0xffffffff")
        a(f"buffer_store_dword v{self.vr}, v{self.vr+1}, s[56:59], s55 offen")
        a("s_mov_b64 exec, -1")


class Cnt:
    def __init__(self, a, kind):
        self.a = a; self.kind = kind; self.issued = 0; self.tags = {}; self.done = 0
        self.maxn = 15 if kind == "lgkmcnt" else 63
    def issue(self, tag=None):
        self.issued += 1
        if tag is not None:
            self.tags[tag] = self.issued
    def need(self, *tags):
        idx = max(self.tags[t] for t in tags)
        if idx <= self.done:
            return
        n = self.issued - idx
        if n > self.maxn:
            n = self.maxn
        self.a(f"s_waitcnt {self.kind}({n})")
        self.done = self.issued - n
    def drain(self):
        if self.done < self.issued:
            self.a(f"s_waitcnt {self.kind}(0)")
            self.done = self.issued
```

```python
from gen_common import *
from gen_gemm2 import w2pack_body
CONV_GRID = 144 + 72

CSTR = 4384
CH_STRIDE = 8 * CSTR + KROW
CONV_LDS = 4 * CH_STRIDE

def conv_kernel(a, name, prof=False):
    st = Stamps(a, prof, kid=0)
    kernel_header(a, name)
    a(f"s_cmp_ge_u32 s2, {CONV_GRID}")
    a(f"s_cbranch_scc1 {name}_end")
    a("s_cmp_ge_u32 s2, 144")
    a(f"s_cbranch_scc0 {name}_cv")
    a("s_sub_u32 s2, s2, 144")
    a("s_lshl_b32 s2, s2, 1")
    w2pack_body(a, name + "_wp0", 2)
    a("s_add_u32 s2, s2, 1")
    a("s_barrier")
    w2pack_body(a, name + "_wp1", 2)
    a(f"s_branch {name}_end")
    a.label(f"{name}_cv")
    a(f"s_load_dwordx2 s[6:7], s[0:1], {ARG['ws']}")
    a("""
    v_lshrrev_b32 v1, 6, v0             ; wave
    v_and_b32 v2, 63, v0                ; lane
    s_nop 0
    v_readfirstlane_b32 s3, v1
    s_lshl_b32 s24, s2, 2
    s_add_u32 s24, s24, s3              ; channel
    v_lshlrev_b32 v3, 4, v2             ; lane*16
    s_waitcnt lgkmcnt(0)
    """)
    st.stamp()
    srd(a, 8, 6, 576 * TS, WS_UT)
    srd(a, 16, 6, 576 * KROW, WS_KEXP)
    srd(a, 20, 6, 576 * TS, WS_YT)
    a(f"""
    s_lshl_b32 s26, s24, 2
    s_add_u32 s26, s6, s26
    s_addc_u32 s27, s7, 0
    s_load_dword s32, s[26:27], {WS_KSCALE}
    s_mul_i32 s25, s3, {CH_STRIDE}
    s_add_u32 s36, s25, {8*CSTR}
    s_mul_i32 s28, s24, {TS}
    s_mul_i32 s29, s24, {KROW}
    """)
    for i in range(4):
        a(f"s_add_u32 m0, s25, {7*CSTR + 256 + 1024*i}")
        a(f"s_add_u32 s37, s28, {1024*i}")
        a(f"buffer_load_dwordx4 v3, s[8:11], s37 offen lds")
    for i in range(5):
        if i == 4:
            a("s_mov_b64 exec, 0xffff")
        a(f"s_add_u32 m0, s36, {1024*i}")
        a(f"s_add_u32 s37, s29, {1024*i}")
        a(f"buffer_load_dwordx4 v3, s[16:19], s37 offen lds")
    a(f"""
    s_mov_b64 exec, -1
    v_mov_b32 v8, 0
    v_mov_b32 v9, 0
    v_mov_b32 v10, 0
    v_mov_b32 v11, 0
    v_add_u32 v6, s25, v3
    s_mov_b64 exec, 0x3ffff
    ds_write_b128 v6, v[8:11] offset:{7*CSTR-32}
    s_mov_b64 exec, -1
    """)
    a(f"""
    v_and_b32 v40, 15, v2               ; n / j
    v_lshrrev_b32 v41, 4, v2            ; g
    v_sub_u32 v42, v41, v40
    v_lshlrev_b32 v42, 4, v42
    v_add_u32 v42, 240, v42
    v_add_u32 v42, s36, v42             ; v42 = kaddr
    v_and_b32 v43, 3, v40
    v_lshrrev_b32 v44, 3, v40
    v_lshl_add_u32 v43, v44, 2, v43     ; p
    v_lshrrev_b32 v45, 2, v40
    v_xor_b32 v45, v45, v44
    v_and_b32 v45, 1, v45               ; q
    v_mul_u32_u24 v43, {CSTR}, v43
    v_lshl_add_u32 v43, v45, 8, v43
    v_lshl_add_u32 v43, v41, 4, v43
    v_add_u32 v43, s25, v43             ; v43 = uaddr
    v_lshrrev_b32 v44, 1, v41
    v_xor_b32 v45, v41, v44
    v_and_b32 v45, 1, v45
    v_lshlrev_b32 v46, 4, v40
    v_lshl_add_u32 v46, v45, 8, v46
    v_lshl_add_u32 v46, v44, 3, v46
    """)
    ACC = 96
    FR = [128, 192]
    for r in range(32):
        a(f"v_mov_b32 v{ACC+r}, 0")
    a("s_waitcnt vmcnt(5) lgkmcnt(0)")
    st.stamp()
    for k in range(5):
        if k == 4:
            a("s_mov_b64 exec, 0xffff")
        a(f"ds_read_b128 v[{48+8*k}:{51+8*k}], v6 offset:{7*CSTR - 16 + 1024*k}")
        a(f"ds_read_b128 v[{52+8*k}:{55+8*k}], v6 offset:{7*CSTR + 1024*k}")
    a("s_mov_b64 exec, -1")
    for k in range(5):
        W = 48 + 8 * k
        a(f"s_waitcnt lgkmcnt({2*(4-k)})" if k == 0 else "")
        if k == 4:
            a("s_mov_b64 exec, 0xffff")
        for p in range(7):
            s = p + 1
            dst = 8 + 4 * p
            j0 = s // 2
            if s % 2 == 1:
                for q in range(4):
                    a(f"v_alignbit_b32 v{dst+q}, v{W+j0+q+1}, v{W+j0+q}, 16")
                a(f"ds_write_b128 v6, v[{dst}:{dst+3}] offset:{p*CSTR + 1024*k}")
            elif j0 % 2 == 0:
                a(f"ds_write_b128 v6, v[{W+j0}:{W+j0+3}] offset:{p*CSTR + 1024*k}")
            else:
                for q in range(4):
                    a(f"v_mov_b32 v{dst+q}, v{W+j0+q}")
                a(f"ds_write_b128 v6, v[{dst}:{dst+3}] offset:{p*CSTR + 1024*k}")
        if k == 0:
            a("s_waitcnt lgkmcnt(7)")
    a("s_mov_b64 exec, -1")
    a("s_waitcnt vmcnt(0) lgkmcnt(0)")
    st.stamp()
    lg = Cnt(a, "lgkmcnt")
    def rd_k(e, g):
        b = FR[e & 1]
        a(f"ds_read_b128 v[{b+4*g}:{b+4*g+3}], v42 offset:{512*(7-g) + 64*(7-e)}")
        lg.issue(("k", e, g))
    def rd_u(e, g):
        b = FR[e & 1]
        a(f"ds_read_b128 v[{b+32+4*g}:{b+32+4*g+3}], v43 offset:{512*g + 64*(7-e)}")
        lg.issue(("u", e, g))
    for g in range(8):
        rd_k(0, g); rd_u(0, g)
    for e in range(8):
        b = FR[e & 1]
        fill = []
        if e < 7:
            for g in range(8):
                fill += [(rd_k, g), (rd_u, g)]
        for tau in range(8):
            for gam in range(tau + 1):
                beta = tau - gam
                lg.need(("k", e, gam), ("u", e, beta))
                a(f"v_mfma_f32_16x16x32_f16 v[{ACC+4*tau}:{ACC+4*tau+3}], v[{b+32+4*beta}:{b+32+4*beta+3}], v[{b+4*gam}:{b+4*gam+3}], v[{ACC+4*tau}:{ACC+4*tau+3}]")
                if fill:
                    f, g = fill.pop(0); f(e + 1, g)
    st.stamp()
    a("s_nop 7")
    for tau in range(8):
        for r in range(4):
            a(f"v_mul_f32 v{ACC+4*tau+r}, s32, v{ACC+4*tau+r}")
        a(f"v_cvt_pk_bf16_f32 v{16+2*tau}, v{ACC+4*tau}, v{ACC+4*tau+1}")
        a(f"v_cvt_pk_bf16_f32 v{17+2*tau}, v{ACC+4*tau+2}, v{ACC+4*tau+3}")
        a(f"buffer_store_dwordx2 v[{16+2*tau}:{17+2*tau}], v46, s[20:23], s28 offen offset:{512*tau}")
    st.stamp()
    if prof:
        a("s_waitcnt vmcnt(0)")
    st.stamp()
    st.dump(6, 3, 4)
    a.label(f"{name}_end")
    a("s_endpgm")
    return kernel_desc(name, 256, sgpr=102)
```

```python
from gen_common import *
import math

G1_SLOT = 16384 + 2 * 9216
G1_LDS = 4 * G1_SLOT
NST = 18

def gemm1_kernel(a, name, exact_round=False, prof=False):
    kernel_header(a, name)
    a("s_cmp_ge_u32 s2, 256")
    a(f"s_cbranch_scc1 {name}_end")
    a(f"s_load_dwordx4 s[4:7], s[0:1], {ARG['w1']}")
    a(f"s_load_dwordx2 s[8:9], s[0:1], {ARG['ws']}")
    a("""
    v_lshrrev_b32 v2, 6, v0
    v_and_b32 v1, 63, v0                ; lane
    s_nop 0
    v_readfirstlane_b32 s3, v2          ; wave
    s_and_b32 s10, s2, 7
    s_lshr_b32 s11, s2, 3
    s_and_b32 s12, s11, 3
    s_lshl_b32 s10, s10, 2
    s_add_u32 s10, s10, s12             ; cb
    s_lshr_b32 s11, s11, 2              ; rb
    s_and_b32 s13, s3, 3                ; wm
    s_waitcnt lgkmcnt(0)
    """)
    srd(a, 16, 8, 2048 * 1152, WS_HN)
    srd(a, 24, 8, 2048 * 9216, WS_HH)
    a("""
    s_cmp_ge_u32 s3, 6
    s_cselect_b32 s20, s6, s4
    s_cselect_b32 s21, s7, s5
    s_and_b32 s21, s21, 0xffff
    """)
    a(f"s_mov_b32 s22, {576*9216}")
    a("s_mov_b32 s23, 0x00020000")
    a(f"""
    v_and_b32 v3, 15, v1                ; l&15
    v_lshrrev_b32 v4, 4, v1             ; g
    v_bfe_u32 v5, v1, 2, 2
    v_sub_u32 v5, 4, v5
    v_and_b32 v5, 3, v5
    v_xor_b32 v5, v5, v4
    v_lshlrev_b32 v5, 4, v5
    v_lshl_add_u32 v2, v3, 6, v5
    s_lshl_b32 s14, s13, 12
    v_add_u32 v6, s14, v2               ; vXa0
    v_add_u32 v7, {2*G1_SLOT}, v6       ; vXa1
    v_lshrrev_b32 v4, 2, v1
    v_mul_u32_u24 v8, 288, v4
    v_and_b32 v5, 3, v1
    v_lshl_add_u32 v8, v5, 3, v8        ; vWa0
    v_add_u32 v9, {2*G1_SLOT}, v8       ; vWa1
    """)
    a("s_cmp_ge_u32 s3, 4")
    a(f"s_cbranch_scc1 {name}_p1")
    gemm1_path(a, name, 0, exact_round, prof)
    a(f"s_branch {name}_end")
    a.label(f"{name}_p1")
    gemm1_path(a, name, 1, exact_round, prof)
    a.label(f"{name}_end")
    a("s_endpgm")
    return kernel_desc(name, 256, sgpr=102)

def gemm1_path(a, name, wn, exact_round, prof):
    st = Stamps(a, prof, kid=1)
    NT = 5 if wn == 0 else 4
    T0 = 0 if wn == 0 else 5
    VX = [16, 32]
    VW = 48
    ACC = 88
    nd = 4 if wn == 0 else 5
    lg = Cnt(a, "lgkmcnt"); vm = Cnt(a, "vmcnt")
    def acc(i, j, mat):
        return ACC + ((i * NT + j) * 2 + mat) * 4
    st.stamp()
    if wn == 0:
        a(f"""
        v_lshlrev_b32 v10, 4, v1
        s_lshl_b32 s14, s11, 4
        s_lshl_b32 s15, s13, 2
        s_add_u32 s14, s14, s15
        s_mul_i32 s31, s14, {18*1024}
        s_lshl_b32 s30, s13, 12
        """)
    else:
        a(f"""
        s_and_b32 s14, s3, 1                ; hv
        s_mul_i32 s15, s14, {16*9216}
        s_mul_i32 s31, s10, 288
        s_add_u32 s15, s15, s31
        s_mov_b32 s32, {(1<<32)//18 + 1}
        s_lshr_b32 s33, s13, 1              ; matrix
        s_mul_i32 s30, s33, 9216
        s_mul_i32 s33, s14, 4608
        s_add_u32 s30, s30, s33
        s_add_u32 s30, s30, 16384
        """)
        for i in range(5):
            a(f"""
            v_add_u32 v4, {64*i}, v1
            v_mul_hi_u32 v5, v4, s32            ; row
            v_mul_u32_u24 v15, 18, v5
            v_sub_u32 v4, v4, v15               ; c
            v_mul_u32_u24 v5, 9216, v5
            v_lshl_add_u32 v{10+i}, v4, 4, v5
            v_add_u32 v{10+i}, s15, v{10+i}
            """)
    def dma_piece(s, i):
        slot = s & 3
        if wn == 0:
            a(f"s_add_u32 m0, s30, {slot*G1_SLOT + 1024*i}")
            a(f"s_add_u32 s34, s31, {(i*18 + s)*1024}")
            a(f"buffer_load_dwordx4 v10, s[16:19], s34 offen lds")
        else:
            a(f"s_add_u32 m0, s30, {slot*G1_SLOT + 1024*i}")
            a(f"s_mov_b32 s34, {s*32*9216}")
            if i == 4:
                a("s_mov_b64 exec, 0xffffffff")
            a(f"buffer_load_dwordx4 v{10+i}, s[20:23], s34 offen lds")
            if i == 4:
                a("s_mov_b64 exec, -1")
        vm.issue(("d", s))
    def xread(s, i):
        slot = s & 3
        base = "v6" if slot < 2 else "v7"
        off = (slot & 1) * G1_SLOT
        b = VX[s & 1]
        a(f"ds_read_b128 v[{b+4*i}:{b+4*i+3}], {base} offset:{off + 1024*i}")
        lg.issue(("x", s, i))
    def wread(s, j, mat, h):
        slot = s & 3
        base = "v8" if slot < 2 else "v9"
        off = (slot & 1) * G1_SLOT + 16384
        r = VW + (j * 2 + mat) * 4 + 2 * h
        o = off + mat * 9216 + (T0 + j) * 32 + h * 16 * 288
        a(f"ds_read_b64_tr_b16 v[{r}:{r+1}], {base} offset:{o}")
        lg.issue(("w", s, j, mat, h))
    for s in range(3):
        for i in range(nd):
            dma_piece(s, i)
    for r in range(ACC, ACC + 32 * NT):
        a(f"v_mov_b32 v{r}, 0")
    vm.need(("d", 0))
    a("s_barrier")
    st.stamp()
    for i in range(4):
        xread(0, i)
    for j in range(NT):
        for mat in range(2):
            for h in range(2):
                wread(0, j, mat, h)
    for s in range(NST):
        nxt = s + 1 < NST
        if nxt:
            vm.need(("d", s + 1))
            a("s_barrier")
        if s in (1, 5, 9, 13, 17):
            st.stamp()
        b = VX[s & 1]
        fill = []
        if nxt:
            fill += [("x", i) for i in range(4)]
        if s + 3 < NST:
            dm = [("d", i) for i in range(nd)]
            f2 = []
            while fill or dm:
                if fill: f2.append(fill.pop(0))
                if dm: f2.append(dm.pop(0))
            fill = f2
        pend = []
        groups = [(j, mat) for j in range(NT) for mat in range(2)]
        for gi, (j, mat) in enumerate(groups):
            w = VW + (j * 2 + mat) * 4
            for i in range(4):
                lg.need(("w", s, j, mat, 0), ("w", s, j, mat, 1), ("x", s, i))
                c = acc(i, j, mat)
                a(f"v_mfma_f32_16x16x32_bf16 v[{c}:{c+3}], v[{w}:{w+3}], v[{b+4*i}:{b+4*i+3}], v[{c}:{c+3}]")
                if pend:
                    wread(*pend.pop(0))
                elif fill:
                    k, idx = fill.pop(0)
                    if k == "x": xread(s + 1, idx)
                    else: dma_piece(s + 3, idx)
            if nxt:
                pend += [(s + 1, j, mat, 0), (s + 1, j, mat, 1)]
        while pend:
            wread(*pend.pop(0))
        while fill:
            k, idx = fill.pop(0)
            if k == "x": xread(s + 1, idx)
            else: dma_piece(s + 3, idx)
    st.stamp()
    a(f"""
    s_lshl_b32 s14, s11, 4
    s_lshl_b32 s15, s13, 2
    s_add_u32 s14, s14, s15
    s_mul_i32 s35, s14, {144*1024}
    s_mul_i32 s36, s10, 9
    s_add_u32 s36, s36, {T0}            ; J0
    s_mov_b32 s37, {f32hex(-math.log2(math.e))}
    s_mov_b32 s38, 0xffff0000
    s_mov_b32 s42, s37
    s_mov_b32 s43, s37
    s_nop 7
    """)
    for j in range(NT):
        a(f"""
        s_add_u32 s39, s36, {j}
        s_lshr_b32 s40, s39, 1
        s_lshl_b32 s40, s40, 10
        s_and_b32 s39, s39, 1
        s_lshl_b32 s39, s39, 3
        s_add_u32 s40, s40, s39
        s_add_u32 s40, s40, s35
        """)
        for i in range(4):
            g = acc(i, j, 0); u = acc(i, j, 1)
            T = 16 + 16 * (i & 1)
            if exact_round:
                a(f"""
                v_cvt_pk_bf16_f32 v{T}, v{g}, v{g+1}
                v_cvt_pk_bf16_f32 v{T+1}, v{g+2}, v{g+3}
                v_cvt_pk_bf16_f32 v{T+2}, v{u}, v{u+1}
                v_cvt_pk_bf16_f32 v{T+3}, v{u+2}, v{u+3}
                v_lshlrev_b32 v{g}, 16, v{T}
                v_and_b32 v{g+1}, s38, v{T}
                v_lshlrev_b32 v{g+2}, 16, v{T+1}
                v_and_b32 v{g+3}, s38, v{T+1}
                v_lshlrev_b32 v{u}, 16, v{T+2}
                v_and_b32 v{u+1}, s38, v{T+2}
                v_lshlrev_b32 v{u+2}, 16, v{T+3}
                v_and_b32 v{u+3}, s38, v{T+3}
                """)
            if exact_round:
                for r in range(4):
                    a(f"v_mul_f32 v{T+4+r}, s37, v{g+r}")
                for r in range(4):
                    a(f"v_exp_f32 v{T+4+r}, v{T+4+r}")
                for r in range(4):
                    a(f"v_add_f32 v{T+4+r}, 1.0, v{T+4+r}")
                for r in range(4):
                    a(f"v_rcp_f32 v{T+4+r}, v{T+4+r}")
                a("s_nop 0")
                for r in range(4):
                    a(f"v_mul_f32 v{T+4+r}, v{g+r}, v{T+4+r}")
            else:
                a(f"""
                v_pk_mul_f32 v[{T+4}:{T+5}], v[{g}:{g+1}], s[42:43]
                v_pk_mul_f32 v[{T+6}:{T+7}], v[{g+2}:{g+3}], s[42:43]
                v_exp_f32 v{T+4}, v{T+4}
                v_exp_f32 v{T+5}, v{T+5}
                v_exp_f32 v{T+6}, v{T+6}
                v_exp_f32 v{T+7}, v{T+7}
                v_pk_mul_f32 v[{g}:{g+1}], v[{g}:{g+1}], v[{u}:{u+1}]
                v_pk_mul_f32 v[{g+2}:{g+3}], v[{g+2}:{g+3}], v[{u+2}:{u+3}]
                v_pk_add_f32 v[{T+4}:{T+5}], v[{T+4}:{T+5}], 1.0 op_sel_hi:[1,0]
                v_pk_add_f32 v[{T+6}:{T+7}], v[{T+6}:{T+7}], 1.0 op_sel_hi:[1,0]
                v_rcp_f32 v{T+4}, v{T+4}
                v_rcp_f32 v{T+5}, v{T+5}
                v_rcp_f32 v{T+6}, v{T+6}
                v_rcp_f32 v{T+7}, v{T+7}
                s_nop 0
                v_pk_mul_f32 v[{T+4}:{T+5}], v[{g}:{g+1}], v[{T+4}:{T+5}]
                v_pk_mul_f32 v[{T+6}:{T+7}], v[{g+2}:{g+3}], v[{T+6}:{T+7}]
                """)
            if exact_round:
                a(f"""
                v_cvt_pk_bf16_f32 v{T}, v{T+4}, v{T+5}
                v_cvt_pk_bf16_f32 v{T+1}, v{T+6}, v{T+7}
                v_lshlrev_b32 v{T+4}, 16, v{T}
                v_and_b32 v{T+5}, s38, v{T}
                v_lshlrev_b32 v{T+6}, 16, v{T+1}
                v_and_b32 v{T+7}, s38, v{T+1}
                """)
                for r in range(4):
                    a(f"v_mul_f32 v{T+4+r}, v{T+4+r}, v{u+r}")
            a(f"""
            v_cvt_pk_bf16_f32 v{T+8}, v{T+4}, v{T+5}
            v_cvt_pk_bf16_f32 v{T+9}, v{T+6}, v{T+7}
            s_add_u32 s41, s40, {i*144*1024}
            buffer_store_dwordx2 v[{T+8}:{T+9}], v2, s[24:27], s41 offen
            """)
    st.stamp()
    if prof:
        a("s_waitcnt vmcnt(0)")
    st.stamp()
    st.dump(8, 3, 8)
```

```python
from gen_common import *

G2_LDS = 163840
NCH = 18

def gemm2_kernel(a, name, prof=False):
    st = Stamps(a, prof, kid=2)
    kernel_header(a, name)
    a("s_cmp_ge_u32 s2, 256")
    a(f"s_cbranch_scc1 {name}_end")
    a(f"s_load_dwordx2 s[6:7], s[0:1], {ARG['out']}")
    a(f"s_load_dwordx2 s[8:9], s[0:1], {ARG['ws']}")
    a("""
    v_lshrrev_b32 v2, 6, v0
    v_and_b32 v1, 63, v0                ; lane
    s_nop 0
    v_readfirstlane_b32 s3, v2          ; wave
    s_and_b32 s10, s2, 7
    s_lshr_b32 s11, s2, 3
    s_and_b32 s12, s11, 7               ; cbk
    s_lshr_b32 s11, s11, 3
    s_lshl_b32 s10, s10, 2
    s_add_u32 s11, s11, s10             ; rbk
    s_waitcnt lgkmcnt(0)
    """)
    st.stamp()
    srd(a, 16, 8, 2048 * 9216, WS_HH)
    srd(a, 20, 8, 8 * 144 * 5120, WS_W2P)
    srd(a, 24, 6, 2048 * 1152)
    srd(a, 28, 8, 2048 * 1152, WS_H)
    a(f"""
    v_and_b32 v3, 15, v1
    v_lshrrev_b32 v4, 4, v1             ; g
    v_bfe_u32 v5, v1, 2, 2
    v_sub_u32 v5, 4, v5
    v_and_b32 v5, 3, v5
    v_xor_b32 v5, v5, v4
    v_lshlrev_b32 v5, 4, v5
    v_lshl_add_u32 v6, v3, 6, v5
    v_lshlrev_b32 v8, 4, v1             ; lane*16
    s_mul_i32 s33, s11, {4*144*1024}
    s_lshl_b32 s14, s3, 10
    s_add_u32 s33, s33, s14
    s_mul_i32 s34, s12, {144*5120}
    s_mul_i32 s14, s3, 5120
    s_add_u32 s34, s34, s14
    """)
    ACC = 64
    FB = [144, 180, 216]
    vm = Cnt(a, "vmcnt")
    def ldx(i, q):
        r = FB[i % 3] + 4 * q
        a(f"s_add_u32 s35, s33, {(q*144 + i*8)*1024}")
        a(f"buffer_load_dwordx4 v[{r}:{r+3}], v6, s[16:19], s35 offen")
        vm.issue(("x", i, q))
    def ldw(i, n):
        r = FB[i % 3] + 16 + 4 * n
        a(f"s_add_u32 s36, s34, {i*8*5120 + (n//4)*4096}")
        a(f"buffer_load_dwordx4 v[{r}:{r+3}], v8, s[20:23], s36 offen offset:{(n%4)*1024}")
        vm.issue(("w", i, n))
    for i in range(3):
        for q in range(4): ldx(i, q)
        for n in range(5): ldw(i, n)
    for r in range(ACC, ACC + 80):
        a(f"v_mov_b32 v{r}, 0")
    for i in range(NCH):
        b = FB[i % 3]
        if i in (0, 1, 6, 12): st.stamp()
        for n in range(5):
            for q in range(4):
                vm.need(("x", i, q), ("w", i, n))
                c = ACC + (q * 5 + n) * 4
                a(f"v_mfma_f32_16x16x32_bf16 v[{c}:{c+3}], v[{b+16+4*n}:{b+16+4*n+3}], v[{b+4*q}:{b+4*q+3}], v[{c}:{c+3}]")
                if n == 4 and i + 3 < NCH:
                    ldx(i + 3, q)
            if i + 3 < NCH:
                ldw(i + 3, n)
    st.stamp()
    a(f"""
    s_mul_i32 s46, s3, 20480
    v_lshl_add_u32 v4, v1, 4, s46
    s_nop 7
    """)
    for t in range(20):
        c = ACC + 4 * t
        a(f"ds_write_b128 v4, v[{c}:{c+3}] offset:{1024*t}")
    a("s_waitcnt lgkmcnt(0)")
    a("s_barrier")
    st.stamp()
    a(f"""
    v_lshlrev_b32 v4, 4, v0             ; tid*16
    v_add_u32 v5, {4*20480}, v4
    s_mov_b32 s38, 0xffff0000
    """)
    for k in range(3):
        if k == 2:
            a("s_cmp_ge_u32 s3, 4")
            a(f"s_cbranch_scc1 {name}_fin")
        for w in range(8):
            base = "v4" if w < 4 else "v5"
            a(f"ds_read_b128 v[{16+4*w}:{19+4*w}], {base} offset:{(w&3)*20480 + 8192*k}" if (w&3)*20480 + 8192*k < 65536 else
              f"v_add_u32 v7, {8192*k}, {base}\nds_read_b128 v[{16+4*w}:{19+4*w}], v7 offset:{(w&3)*20480}")
        a(f"""
        s_add_u32 s39, s3, {8*k}
        s_mul_i32 s40, s39, 52
        s_lshr_b32 s40, s40, 8              ; q = T/5
        s_mul_i32 s41, s40, 5
        s_sub_u32 s41, s39, s41             ; n
        s_lshl_b32 s42, s11, 6
        s_lshl_b32 s40, s40, 4
        s_add_u32 s42, s42, s40
        v_add_u32 v7, s42, v3
        v_mul_u32_u24 v7, 1152, v7
        s_mul_i32 s42, s12, 144
        s_lshl_b32 s43, s41, 5
        s_add_u32 s42, s42, s43
        v_lshrrev_b32 v9, 4, v1
        v_lshl_add_u32 v7, v9, 3, v7
        v_add_u32 v7, s42, v7
        s_lshl_b32 s43, s41, 4
        v_lshl_add_u32 v9, v9, 2, s43
        v_cmp_gt_u32 vcc, 72, v9
        s_and_saveexec_b64 s[44:45], vcc
        buffer_load_dwordx2 v[10:11], v7, s[28:31], 0 offen
        s_waitcnt lgkmcnt(0)
        """)
        for r in range(4):
            a(f"v_add_f32 v{16+r}, v{16+r}, v{20+r}")
            a(f"v_add_f32 v{24+r}, v{24+r}, v{28+r}")
            a(f"v_add_f32 v{32+r}, v{32+r}, v{36+r}")
            a(f"v_add_f32 v{40+r}, v{40+r}, v{44+r}")
        for r in range(4):
            a(f"v_add_f32 v{16+r}, v{16+r}, v{24+r}")
            a(f"v_add_f32 v{32+r}, v{32+r}, v{40+r}")
        for r in range(4):
            a(f"v_add_f32 v{16+r}, v{16+r}, v{32+r}")
        a(f"""
        v_cvt_pk_bf16_f32 v20, v16, v17
        v_cvt_pk_bf16_f32 v21, v18, v19
        v_lshlrev_b32 v16, 16, v20
        v_and_b32 v17, s38, v20
        v_lshlrev_b32 v18, 16, v21
        v_and_b32 v19, s38, v21
        s_waitcnt vmcnt(0)
        v_lshlrev_b32 v20, 16, v10
        v_and_b32 v21, s38, v10
        v_lshlrev_b32 v22, 16, v11
        v_and_b32 v23, s38, v11
        v_add_f32 v16, v16, v20
        v_add_f32 v17, v17, v21
        v_add_f32 v18, v18, v22
        v_add_f32 v19, v19, v23
        v_cvt_pk_bf16_f32 v12, v16, v17
        v_cvt_pk_bf16_f32 v13, v18, v19
        buffer_store_dwordx2 v[12:13], v7, s[24:27], 0 offen
        s_mov_b64 exec, -1
        """)
    a.label(f"{name}_fin")
    st.stamp()
    st.dump(8, 3, 8)
    a.label(f"{name}_end")
    a("s_endpgm")
    return kernel_desc(name, 256, sgpr=102)


def w2pack_body(a, name, sblk):
    a(f"s_load_dwordx2 s[4:5], s[0:1], {ARG['w2']}")
    a(f"s_load_dwordx2 s[8:9], s[0:1], {ARG['ws']}")
    a("""
    v_lshrrev_b32 v2, 6, v0
    v_and_b32 v1, 63, v0
    s_nop 0
    v_readfirstlane_b32 s3, v2
    v_lshlrev_b32 v8, 4, v1
    s_waitcnt lgkmcnt(0)
    """)
    srd(a, 16, 4, 4608 * 1152)
    srd(a, 20, 8, 8 * 144 * 5120, WS_W2P)
    a(f"""
    s_mul_i32 s30, s3, 9216
    s_mul_i32 s31, s{sblk}, 36864
    s_add_u32 s31, s31, s30
    """)
    for i in range(9):
        a(f"s_add_u32 m0, s30, {1024*i}")
        a(f"s_add_u32 s32, s31, {1024*i}")
        a(f"buffer_load_dwordx4 v8, s[16:19], s32 offen lds")
    a(f"""
    v_lshrrev_b32 v4, 2, v1
    v_mul_u32_u24 v9, 1152, v4
    v_and_b32 v5, 3, v1
    v_lshl_add_u32 v9, v5, 3, v9
    s_mul_i32 s33, s3, 288
    v_add_u32 v9, s33, v9
    s_mul_i32 s34, s3, {2*144*5120}
    s_mul_i32 s35, s{sblk}, 5120
    s_add_u32 s34, s34, s35
    v_and_b32 v3, 15, v1
    v_cmp_gt_u32 vcc, 8, v3
    s_waitcnt vmcnt(0)
    s_barrier
    """)
    for c in range(2):
        for n in range(5):
            r = 16 + 4 * (c * 5 + n)
            o = c * 144 + n * 32
            a(f"ds_read_b64_tr_b16 v[{r}:{r+1}], v9 offset:{o}")
            a(f"ds_read_b64_tr_b16 v[{r+2}:{r+3}], v9 offset:{o + 16*1152}")
    a("s_waitcnt lgkmcnt(0)")
    for c in range(2):
        r = 16 + 4 * (c * 5 + 4)
        for k in range(4):
            a(f"v_cndmask_b32 v{r+k}, 0, v{r+k}, vcc")
    for c in range(2):
        for n in range(5):
            r = 16 + 4 * (c * 5 + n)
            a(f"s_add_u32 s35, s34, {c*144*5120 + (n//4)*4096}")
            a(f"buffer_store_dwordx4 v[{r}:{r+3}], v8, s[20:23], s35 offen offset:{(n%4)*1024}")
```

```python
from gen_common import *
import math

KG_LDS = 22784

def kgen_body(a, name, sblk, prof=False):
    st = Stamps(a, prof, kid=3, vr=102)
    st.stamp()
    a("s_load_dwordx8 s[8:15], s[0:1], 8")
    a("s_load_dwordx4 s[16:19], s[0:1], 40")
    a("s_load_dwordx2 s[20:21], s[0:1], 56")
    a(f"s_load_dwordx2 s[22:23], s[0:1], {ARG['ws']}")
    a(f"s_mov_b32 s30, {f32hex(math.log2(math.e))}")
    a(f"s_mov_b32 s31, {f32hex(1.0/(2*math.pi))}")
    a(f"s_mov_b32 s32, {f32hex(2048.0)}")
    a(f"""
    v_lshrrev_b32 v1, 6, v0             ; wave
    v_and_b32 v2, 63, v0                ; lane
    v_and_b32 v3, 15, v0                ; l&15
    v_bfe_u32 v4, v0, 4, 2              ; g = (l>>4)&3
    s_lshl_b32 s3, s{sblk}, 8           ; d*256 bytes
    v_lshl_add_u32 v5, v0, 1, s3
    s_lshl_b32 s4, s{sblk}, 1
    v_mov_b32 v6, s4
    v_mov_b32 v28, 0                    ; l=2048 term
    v_mov_b32 v29, 0                    ; max |W|
    v_cmp_gt_u32 vcc, 128, v0
    s_and_saveexec_b64 s[24:25], vcc
    s_cbranch_execz {name}_p0a
    s_waitcnt lgkmcnt(0)
    global_load_ushort v10, v5, s[8:9]
    global_load_ushort v11, v5, s[10:11]
    global_load_ushort v12, v5, s[12:13]
    global_load_ushort v13, v5, s[14:15]
    global_load_ushort v14, v5, s[16:17]
    global_load_ushort v15, v5, s[18:19]
    global_load_ushort v16, v6, s[20:21]
    """)
    a.label(f"{name}_p0a")
    a("s_mov_b64 exec, -1")
    a("v_lshlrev_b32 v7, 3, v0")
    a("v_sub_u32 v7, 2047, v7        ; l for e=0")
    a("s_mov_b32 s33, 0xffffff80")
    for e in range(8):
        a(f"""
        v_subrev_u32 v17, {e}, v7
        v_cvt_f32_u32 v18, v17
        v_cvt_pk_bf16_f32 v18, v18, v18
        v_and_b32 v18, 0xffff, v18
        v_and_b32 v19, s33, v18
        v_add_u32 v18, v18, v19
        v_subrev_u32 v18, 34176, v18
        v_cmp_gt_u32 vcc, 256, v17
        s_nop 1
        v_cndmask_b32 v18, v18, v17, vcc
        v_lshlrev_b32 v{72+e}, 2, v18
        """)
    a(f"""
    v_cmp_gt_u32 vcc, 128, v0
    s_and_saveexec_b64 s[24:25], vcc
    s_cbranch_execz {name}_p0skip
    s_waitcnt vmcnt(0)
    v_lshlrev_b32 v10, 16, v10
    v_lshlrev_b32 v11, 16, v11
    v_lshlrev_b32 v12, 16, v12
    v_lshlrev_b32 v13, 16, v13
    v_lshlrev_b32 v14, 16, v14
    v_lshlrev_b32 v15, 16, v15
    v_lshlrev_b32 v16, 16, v16
    v_mul_f32 v16, s30, v16
    v_exp_f32 v16, v16
    s_nop 0
    v_cvt_pk_bf16_f32 v16, v16, v16
    v_lshlrev_b32 v16, 16, v16
    v_mul_f32 v10, v16, v10             ; a
    v_mul_f32 v11, v16, v11             ; b
    v_mul_f32 v12, v16, v12             ; dBr
    v_mul_f32 v13, v16, v13             ; dBi
    v_mul_f32 v20, s30, v10             ; a'
    v_mul_f32 v21, s31, v11             ; b'
    v_mul_f32 v17, v15, v13             ; Ci*dBi
    v_fma_f32 v22, v14, v12, -v17       ; Wr
    v_mul_f32 v17, v15, v12             ; Ci*dBr
    v_fma_f32 v23, v14, v13, v17        ; Wi
    v_lshlrev_b32 v7, 4, v0
    ds_write_b128 v7, v[20:23]
    v_max_f32 v29, abs(v22), abs(v23)
    ; l = 2048 term
    v_mul_f32 v24, s32, v20
    v_exp_f32 v24, v24
    v_mul_f32 v25, s32, v21
    v_fract_f32 v25, v25
    v_cos_f32 v26, v25
    v_sin_f32 v27, v25
    s_nop 0
    v_mul_f32 v27, v23, v27
    v_fma_f32 v26, v22, v26, -v27
    v_mul_f32 v28, v24, v26
    """)
    a.label(f"{name}_p0skip")
    a(f"""
    s_mov_b64 exec, -1
    s_nop 1
    v_add_f32_dpp v24, v28, v28 quad_perm:[1,0,3,2] row_mask:0xf bank_mask:0xf
    v_max_f32_dpp v25, v29, v29 quad_perm:[1,0,3,2] row_mask:0xf bank_mask:0xf
    s_nop 0
    v_add_f32_dpp v28, v24, v24 quad_perm:[2,3,0,1] row_mask:0xf bank_mask:0xf
    v_max_f32_dpp v29, v25, v25 quad_perm:[2,3,0,1] row_mask:0xf bank_mask:0xf
    s_nop 0
    v_add_f32_dpp v24, v28, v28 row_half_mirror row_mask:0xf bank_mask:0xf
    v_max_f32_dpp v25, v29, v29 row_half_mirror row_mask:0xf bank_mask:0xf
    s_nop 0
    v_add_f32_dpp v28, v24, v24 row_mirror row_mask:0xf bank_mask:0xf
    v_max_f32_dpp v29, v25, v25 row_mirror row_mask:0xf bank_mask:0xf
    v_lshrrev_b32 v14, 4, v0
    v_lshlrev_b32 v14, 2, v14
    ds_write_b32 v14, v29 offset:{22528}
    v_readlane_b32 s26, v28, 0
    v_readlane_b32 s27, v28, 16
    v_readlane_b32 s28, v28, 32
    v_readlane_b32 s29, v28, 48
    s_nop 3
    v_mov_b32 v28, s26
    v_add_f32 v28, s27, v28
    v_add_f32 v28, s28, v28
    v_add_f32 v28, s29, v28
    v_mul_u32_u24 v8, 5120, v1
    v_add_u32 v8, 2048, v8
    v_lshlrev_b32 v9, 9, v1
    v_lshl_add_u32 v9, v4, 6, v9
    v_cvt_f32_u32 v31, v3               ; lj
    v_mul_f32 v30, 0x41800000, v31      ; li
    v_and_b32 v14, 7, v3
    v_lshlrev_b32 v14, 2, v14
    """)
    for r in range(16):
        a(f"v_mov_b32 v{112+r}, 0")
    st.stamp()
    a("s_waitcnt lgkmcnt(0)")
    a("s_barrier")
    st.stamp()
    a(f"ds_read_b32 v29, v14 offset:{22528}")
    for G in range(8):
        S, j = G // 4, G % 4
        a(f"ds_read_b128 v[{80+4*G}:{83+4*G}], v9 offset:{(16*S + j)*16}")
    a(f"""
    s_waitcnt lgkmcnt(8)
    s_nop 1
    v_max_f32_dpp v25, v29, v29 quad_perm:[1,0,3,2] row_mask:0xf bank_mask:0xf
    s_nop 1
    v_max_f32_dpp v29, v25, v25 quad_perm:[2,3,0,1] row_mask:0xf bank_mask:0xf
    s_nop 1
    v_max_f32_dpp v25, v29, v29 row_half_mirror row_mask:0xf bank_mask:0xf
    v_lshrrev_b32 v25, 23, v25
    v_sub_u32 v25, 264, v25
    v_min_u32 v25, 253, v25
    v_max_u32 v15, 1, v25               ; v15 = f1
    v_lshlrev_b32 v29, 23, v15          ; sW
    v_mul_f32 v28, v29, v28
    ds_write_b32 v8, v28 offset:{1152*4}
    s_waitcnt lgkmcnt(1)
    """)
    QH, PH, PL = 40, 56, 16
    PL = 128
    for G in range(8):
        S, j = G // 4, G % 4
        pa, pb, wr, wi = 80 + 4 * G, 81 + 4 * G, 82 + 4 * G, 83 + 4 * G
        a(f"""
        v_pk_mul_f32 v[24:25], v[{pa}:{pa+1}], v[30:31] op_sel_hi:[0,1]
        v_pk_mul_f32 v[26:27], v[{pa}:{pa+1}], v[30:31] op_sel:[1,0] op_sel_hi:[1,1]
        v_pk_mul_f32 v[{wr}:{wi}], v[{wr}:{wi}], v[28:29] op_sel:[0,1] op_sel_hi:[1,1]
        v_exp_f32 v24, v24
        v_exp_f32 v25, v25
        v_fract_f32 v26, v26
        v_fract_f32 v27, v27
        v_cos_f32 v32, v26
        v_cos_f32 v33, v27
        v_sin_f32 v34, v26
        v_sin_f32 v35, v27
        s_nop 0
        v_pk_mul_f32 v[32:33], v[24:25], v[32:33]
        v_pk_mul_f32 v[34:35], v[24:25], v[34:35]
        """)
        for r in range(4):
            if r > 0:
                a(f"""
                v_pk_mul_f32 v[24:25], v[34:35], v[34:35]
                v_pk_add_f32 v[26:27], v[32:33], v[32:33]
                v_pk_fma_f32 v[32:33], v[32:33], v[32:33], v[24:25] neg_lo:[0,0,1] neg_hi:[0,0,1]
                v_pk_mul_f32 v[34:35], v[26:27], v[34:35]
                """)
            a(f"""
            v_mul_f32 v24, v{wi}, v34
            v_mul_f32 v25, v{wi}, v32
            v_cvt_pk_f16_f32 v{QH+4*r+j}, v33, v35
            v_fma_f32 v36, v{wr}, v32, -v24
            v_fma_f32 v37, -v{wr}, v34, -v25
            v_cvt_pk_f16_f32 v{PH+4*r+j}, v36, v37
            v_fma_mix_f32 v36, v{PH+4*r+j}, -1.0, v36 op_sel_hi:[1,0,0]
            v_fma_mix_f32 v37, v{PH+4*r+j}, -1.0, v37 op_sel:[1,0,0] op_sel_hi:[1,0,0]
            v_cvt_pk_f16_f32 v{PL+4*r+j}, v36, v37
            """)
        if j == 3:
            a("s_nop 1")
            for r in range(4):
                a(f"v_mfma_f32_16x16x32_f16 v[{112+4*r}:{115+4*r}], v[{QH+4*r}:{QH+4*r+3}], v[{PH+4*r}:{PH+4*r+3}], v[{112+4*r}:{115+4*r}]")
            for r in range(4):
                a(f"v_mfma_f32_16x16x32_f16 v[{112+4*r}:{115+4*r}], v[{QH+4*r}:{QH+4*r+3}], v[{PL+4*r}:{PL+4*r+3}], v[{112+4*r}:{115+4*r}]")
    st.stamp()
    a("""
    v_lshlrev_b32 v10, 6, v3
    v_lshl_add_u32 v10, v4, 4, v10
    v_add_u32 v10, v10, v8
    s_nop 7
    """)
    for r in range(4):
        a(f"ds_write_b128 v10, v[{112+4*r}:{115+4*r}] offset:{1024*r}")
    a("s_waitcnt lgkmcnt(0)")
    a("s_barrier")
    st.stamp()
    for e in range(8):
        a(f"""
        ds_read_b32 v{32+4*e}, v{72+e} offset:{2048}
        ds_read_b32 v{33+4*e}, v{72+e} offset:{2048+5120}
        ds_read_b32 v{34+4*e}, v{72+e} offset:{2048+10240}
        ds_read_b32 v{35+4*e}, v{72+e} offset:{2048+15360}
        """)
    a("s_waitcnt lgkmcnt(0)")
    for e in range(8):
        a(f"v_add_f32 v{32+4*e}, v{32+4*e}, v{33+4*e}")
        a(f"v_add_f32 v{34+4*e}, v{34+4*e}, v{35+4*e}")
        a(f"v_add_f32 v{20+e}, v{32+4*e}, v{34+4*e}")
    a("v_max_f32 v12, abs(v20), abs(v21)")
    for e in range(2, 8, 2):
        a(f"v_max3_f32 v12, abs(v{20+e}), abs(v{21+e}), v12")
    a(f"""
    s_nop 1
    v_max_f32_dpp v13, v12, v12 quad_perm:[1,0,3,2] row_mask:0xf bank_mask:0xf
    s_nop 1
    v_max_f32_dpp v12, v13, v13 quad_perm:[2,3,0,1] row_mask:0xf bank_mask:0xf
    s_nop 1
    v_max_f32_dpp v13, v12, v12 row_half_mirror row_mask:0xf bank_mask:0xf
    s_nop 1
    v_max_f32_dpp v12, v13, v13 row_mirror row_mask:0xf bank_mask:0xf
    v_lshrrev_b32 v14, 4, v0
    v_lshlrev_b32 v14, 2, v14
    ds_write_b32 v14, v12 offset:{22528+64}
    s_waitcnt lgkmcnt(0)
    s_barrier
    v_lshlrev_b32 v14, 2, v3
    ds_read_b32 v12, v14 offset:{22528+64}
    s_waitcnt lgkmcnt(0)
    s_nop 1
    v_max_f32_dpp v13, v12, v12 quad_perm:[1,0,3,2] row_mask:0xf bank_mask:0xf
    s_nop 1
    v_max_f32_dpp v12, v13, v13 quad_perm:[2,3,0,1] row_mask:0xf bank_mask:0xf
    s_nop 1
    v_max_f32_dpp v13, v12, v12 row_half_mirror row_mask:0xf bank_mask:0xf
    s_nop 1
    v_max_f32_dpp v12, v13, v13 row_mirror row_mask:0xf bank_mask:0xf
    v_lshrrev_b32 v13, 23, v12
    v_sub_u32 v13, 267, v13
    v_min_u32 v13, 253, v13
    v_max_u32 v13, 1, v13
    v_add_u32 v14, v13, v15
    v_sub_u32 v14, 381, v14
    v_max_i32 v14, 1, v14
    v_min_i32 v14, 254, v14
    v_lshlrev_b32 v13, 23, v13          ; scale
    v_lshlrev_b32 v14, 23, v14
    """)
    for e in range(8):
        a(f"v_mul_f32 v{20+e}, v13, v{20+e}")
    for e in range(4):
        a(f"v_cvt_pk_f16_f32 v{32+e}, v{20+2*e}, v{21+2*e}")
    st.stamp()
    if prof:
        a("v_lshrrev_b32 v100, 6, v0")
        a("s_nop 0")
        a("v_readfirstlane_b32 s5, v100")
        st.dump(22, 5, 4)
    srd(a, 36, 22, 576 * KROW, WS_KEXP)
    srd(a, 40, 22, 576 * 4, WS_KSCALE)
    a(f"""
    s_mul_i32 s3, s{sblk}, {KROW}
    v_lshl_add_u32 v15, v0, 4, s3
    buffer_store_dwordx4 v[32:35], v15, s[36:39], 0 offen
    v_mov_b32 v36, 0
    v_mov_b32 v37, 0
    v_mov_b32 v38, 0
    v_mov_b32 v39, 0
    v_add_u32 v15, 4096, v15
    s_lshl_b32 s3, s{sblk}, 2
    v_mov_b32 v16, s3
    v_cmp_gt_u32 vcc, 16, v0
    s_and_saveexec_b64 s[24:25], vcc
    s_cbranch_execz {name}_end
    buffer_store_dwordx4 v[36:39], v15, s[36:39], 0 offen
    v_cmp_eq_u32 vcc, 0, v0
    s_and_saveexec_b64 s[24:25], vcc
    buffer_store_dword v14, v16, s[40:43], 0 offen
    """)
```

```python
from gen_common import *

def ln_body(a, kind, lbl, wt=False):
    a(f"s_load_dwordx2 s[4:5], s[0:1], {ARG['x']}")
    a(f"s_load_dwordx2 s[6:7], s[0:1], {ARG['ws']}")
    a("""
    v_lshrrev_b32 v1, 3, v0
    v_and_b32 v2, 7, v0
    s_lshl_b32 s3, s2, 3
    v_add_u32 v1, s3, v1
    v_mul_u32_u24 v3, 1152, v1
    v_lshl_add_u32 v3, v2, 4, v3
    s_waitcnt lgkmcnt(0)
    """)
    if kind == 1:
        srd(a, 8, 4, 2048 * 1152)
        srd(a, 12, 6, 2048 * 8, WS_STATS1)
    else:
        srd(a, 8, 6, 2048 * 1152, WS_H)
        srd(a, 12, 6, 2048 * 1152, WS_HN)
    for i in range(9):
        a(f"buffer_load_dwordx4 v[{8+4*i}:{11+4*i}], v3, s[8:11], 0 offen offset:{128*i}")
    a(f"s_mov_b32 s20, {f32hex(1.0/576)}")
    a(f"s_mov_b32 s21, {f32hex(576.0)}")
    a(f"s_mov_b32 s22, 0xffff0000")
    a(f"s_mov_b32 s23, {f32hex(1e-5)}")
    for d in range(36):
        if d % 4 == 0:
            a(f"s_waitcnt vmcnt({8 - d//4})")
        a(f"v_lshlrev_b32 v{44+2*d}, 16, v{8+d}")
        a(f"v_and_b32 v{45+2*d}, s22, v{8+d}")
    for j in range(4):
        a(f"v_add_f32 v{116+j}, v{44+j}, v{48+j}")
    for k in range(8, 72):
        a(f"v_add_f32 v{116+(k&3)}, v{116+(k&3)}, v{44+k}")
    def reduce8(dst):
        a(f"""
        v_add_f32 v116, v116, v117
        v_add_f32 v118, v118, v119
        v_add_f32 v4, v116, v118
        s_nop 1
        v_add_f32_dpp v5, v4, v4 quad_perm:[1,0,3,2] row_mask:0xf bank_mask:0xf
        s_nop 1
        v_add_f32_dpp v4, v5, v5 quad_perm:[2,3,0,1] row_mask:0xf bank_mask:0xf
        s_nop 1
        v_add_f32_dpp v5, v4, v4 row_half_mirror row_mask:0xf bank_mask:0xf
        v_mul_f32 v4, s20, v5
        v_fma_f32 v6, -v4, s21, v5
        v_fma_f32 {dst}, v6, s20, v4
        """)
    reduce8("v120")
    for j in range(4):
        a(f"v_sub_f32 v7, v{44+j}, v120")
        a(f"v_mul_f32 v{116+j}, v7, v7")
    for k in range(4, 72):
        a(f"v_sub_f32 v{122+(k&1)}, v{44+k}, v120")
        a(f"v_fma_f32 v{116+(k&3)}, v{122+(k&1)}, v{122+(k&1)}, v{116+(k&3)}")
    reduce8("v121")
    a("""
    v_cvt_pk_bf16_f32 v4, v120, v121
    v_lshlrev_b32 v120, 16, v4          ; m_b
    v_and_b32 v121, s22, v4             ; v_b
    v_add_f32 v121, s23, v121
    v_cvt_pk_bf16_f32 v4, v121, v121
    v_lshlrev_b32 v121, 16, v4
    v_sqrt_f32 v121, v121
    s_nop 0
    v_cvt_pk_bf16_f32 v4, v121, v121
    v_lshlrev_b32 v121, 16, v4          ; s
    """)
    if kind == 1:
        a(f"""
        v_rcp_f32 v122, v121
        v_lshlrev_b32 v3, 3, v1
        v_cmp_eq_u32 vcc, 0, v2
        s_and_saveexec_b64 s[24:25], vcc
        buffer_store_dwordx2 v[120:121], v3, s[12:15], 0 offen
        s_mov_b64 exec, -1
        v_lshrrev_b32 v3, 3, v0
        v_mul_u32_u24 v3, 1184, v3
        v_lshl_add_u32 v3, v2, 4, v3
        v_add_u32 v3, s26, v3
        """)
        srd(a, 28, 6, 576 * TS, WS_UT)
        for d in range(36):
            x0, x1 = 44 + 2 * d, 45 + 2 * d
            a(f"""
            v_sub_f32 v{x0}, v{x0}, v120
            v_sub_f32 v{x1}, v{x1}, v120
            v_cvt_pk_bf16_f32 v4, v{x0}, v{x1}
            v_lshlrev_b32 v{x0}, 16, v4
            v_and_b32 v{x1}, s22, v4
            v_mul_f32 v4, v{x0}, v122
            v_mul_f32 v5, v{x1}, v122
            v_fma_f32 v6, -v4, v121, v{x0}
            v_fma_f32 v7, -v5, v121, v{x1}
            v_fma_f32 v4, v6, v122, v4
            v_fma_f32 v5, v7, v122, v5
            v_cvt_pk_bf16_f32 v4, v4, v5
            v_lshlrev_b32 v5, 16, v4
            v_and_b32 v4, s22, v4
            v_cvt_pk_f16_f32 v{8+d}, v5, v4
            """)
            if d % 4 == 3:
                i = d // 4
                a(f"ds_write_b128 v3, v[{8+4*i}:{11+4*i}] offset:{128*i}")
        a(f"""
        v_bfe_u32 v4, v0, 2, 2
        v_mul_u32_u24 v4, 1184, v4
        v_lshrrev_b32 v5, 4, v0
        v_lshl_add_u32 v4, v5, 5, v4
        v_and_b32 v5, 3, v0
        v_lshl_add_u32 v4, v5, 3, v4
        v_add_u32 v4, s26, v4
        v_mul_u32_u24 v5, {TS}, v0
        s_lshl_b32 s27, s2, 4               ; t0*2 = blk*8*2
        v_add_u32 v5, s27, v5
        s_waitcnt lgkmcnt(0)
        """)
        for m in range(9):
            a(f"ds_read_b64_tr_b16 v[{44+4*m}:{45+4*m}], v4 offset:{128*m}")
            a(f"ds_read_b64_tr_b16 v[{46+4*m}:{47+4*m}], v4 offset:{128*m + 4*1184}")
        for m in range(9):
            a(f"s_waitcnt lgkmcnt({min(15, 2*(8-m))})")
            a(f"s_mov_b32 s27, {64*TS*m}")
            a(f"buffer_store_dwordx4 v[{44+4*m}:{47+4*m}], v5, s[28:31], s27 offen" + (" sc0 sc1" if wt else ""))
    else:
        a("""
        v_rcp_f32 v122, v121
        v_lshrrev_b32 v3, 4, v1             ; t>>4
        v_mul_u32_u24 v3, 18432, v3
        v_lshrrev_b32 v4, 2, v2             ; sub>>2
        v_lshl_add_u32 v3, v4, 10, v3
        v_and_b32 v4, 15, v1                ; r
        v_lshl_add_u32 v3, v4, 6, v3
        v_bfe_u32 v5, v2, 1, 1
        v_lshl_add_u32 v3, v5, 3, v3        ; + half*8
        v_lshrrev_b32 v4, 2, v4
        v_sub_u32 v4, 4, v4
        v_and_b32 v4, 3, v4                 ; f
        v_and_b32 v5, 1, v2
        v_lshlrev_b32 v5, 1, v5             ; g0
        v_xor_b32 v6, v5, v4
        v_lshl_add_u32 v123, v6, 4, v3
        v_or_b32 v5, 1, v5
        v_xor_b32 v6, v5, v4
        v_lshl_add_u32 v124, v6, 4, v3
        """)
        for d in range(36):
            x0, x1 = 44 + 2 * d, 45 + 2 * d
            a(f"""
            v_sub_f32 v{x0}, v{x0}, v120
            v_sub_f32 v{x1}, v{x1}, v120
            v_cvt_pk_bf16_f32 v4, v{x0}, v{x1}
            v_lshlrev_b32 v{x0}, 16, v4
            v_and_b32 v{x1}, s22, v4
            v_mul_f32 v4, v{x0}, v122
            v_mul_f32 v5, v{x1}, v122
            v_fma_f32 v6, -v4, v121, v{x0}
            v_fma_f32 v7, -v5, v121, v{x1}
            v_fma_f32 v4, v6, v122, v4
            v_fma_f32 v5, v7, v122, v5
            v_cvt_pk_bf16_f32 v{8+d}, v4, v5
            """)
            if d % 4 == 3:
                i = d // 4
                a(f"s_mov_b32 s24, {2048*i}")
                a(f"buffer_store_dwordx2 v[{8+4*i}:{9+4*i}], v123, s[12:15], s24 offen")
                a(f"buffer_store_dwordx2 v[{10+4*i}:{11+4*i}], v124, s[12:15], s24 offen")

def ln_kernel(a, name, kind):
    kernel_header(a, name)
    a("s_cmp_ge_u32 s2, 256")
    a(f"s_cbranch_scc1 {name}_end")
    ln_body(a, kind, name)
    a.label(f"{name}_end")
    a("s_endpgm")
    return kernel_desc(name, 128, sgpr=32)
```

```python
from gen_common import *

NW = 6
NM = 3
LN2_LDS = NW * 1536 + 1024
LN2_BLOCK = NW * 64

def ln2_kernel(a, name, prof=False):
    st = Stamps(a, prof, kid=4, vr=94)
    kernel_header(a, name)
    a("s_cmp_ge_u32 s2, 256")
    a(f"s_cbranch_scc1 {name}_end")
    st.stamp()
    a("""
    s_and_b32 s3, s2, 7
    s_lshr_b32 s2, s2, 3
    s_lshl_b32 s3, s3, 5
    s_add_u32 s2, s2, s3
    """)
    a(f"s_load_dwordx2 s[4:5], s[0:1], {ARG['x']}")
    a(f"s_load_dwordx2 s[6:7], s[0:1], {ARG['ws']}")
    a(f"s_load_dwordx2 s[40:41], s[0:1], {ARG['Dskip']}")
    a("""
    v_lshrrev_b32 v1, 6, v0
    v_and_b32 v2, 63, v0                ; lane
    s_nop 0
    v_readfirstlane_b32 s3, v1          ; wave
    v_and_b32 v3, 7, v2                 ; t
    v_lshrrev_b32 v4, 3, v2             ; cg
    s_waitcnt lgkmcnt(0)
    """)
    st.stamp()
    srd(a, 8, 4, 2048 * 1152)
    srd(a, 12, 6, 2048 * 8, WS_STATS1)
    srd(a, 16, 6, 576 * TS, WS_YT)
    srd(a, 20, 6, 2048 * 1152, WS_H)
    srd(a, 24, 6, 2048 * 1152, WS_HN)
    srd(a, 28, 40, 1152)
    X, Y, D = 16, 24, 32
    a(f"""
    s_mul_i32 s32, s3, 1536
    s_mul_i32 s33, s3, {96*TS}
    s_lshl_b32 s34, s2, 4               ; t0*2
    s_add_u32 s33, s33, s34
    v_and_b32 v5, 0x38, v2              ; 8G
    v_and_b32 v6, 1, v2
    v_lshl_add_u32 v5, v6, 2, v5
    v_bfe_u32 v6, v2, 1, 2
    v_add_u32 v5, v5, v6
    v_mul_u32_u24 v5, {TS}, v5
    """)
    for i in range(2):
        if i == 1:
            a("s_mov_b64 exec, 0xffffffff")
        a(f"s_add_u32 m0, s32, {1024*i}")
        a(f"s_add_u32 s35, s33, {64*TS*i}")
        a(f"buffer_load_dwordx4 v5, s[16:19], s35 offen lds")
    a("s_mov_b64 exec, -1")
    a(f"""
    s_lshl_b32 s34, s2, 3
    v_add_u32 v6, s34, v3               ; row
    v_mul_u32_u24 v7, 1152, v6
    s_mul_i32 s35, s3, 192
    v_lshl_add_u32 v8, v4, 3, s35       ; (96w + 4cg)*2
    v_add_u32 v7, v7, v8
    v_lshlrev_b32 v9, 3, v6
    buffer_load_dwordx2 v[10:11], v9, s[12:15], 0 offen
    """)
    for m in range(NM):
        a(f"buffer_load_dwordx2 v[{X+2*m}:{X+2*m+1}], v7, s[8:11], 0 offen offset:{64*m}")
    for m in range(NM):
        a(f"buffer_load_dwordx2 v[{D+2*m}:{D+2*m+1}], v8, s[28:31], 0 offen offset:{64*m}")
    a(f"""
    v_lshlrev_b32 v12, 3, v2
    v_add_u32 v12, s32, v12
    s_mov_b32 s36, 0xffff0000
    s_mov_b32 s37, {f32hex(1.0/576)}
    s_mov_b32 s38, {f32hex(576.0)}
    s_mov_b32 s39, {f32hex(1e-5)}
    v_lshlrev_b32 v15, 5, v3            ; t*32
    v_lshl_add_u32 v14, v1, 2, v15      ; t*32 + w*4
    s_waitcnt vmcnt({1+2*NM})
    """)
    st.stamp()
    for m in range(NM):
        a(f"ds_read_b64_tr_b16 v[{Y+2*m}:{Y+2*m+1}], v12 offset:{512*m}")
    a(f"s_waitcnt vmcnt({2*NM})")
    a("v_rcp_f32 v13, v11")
    H = 48
    a("s_waitcnt vmcnt(0) lgkmcnt(0)")
    st.stamp()
    for dw in range(2 * NM):
        x, y, d = X + dw, Y + dw, D + dw
        h0, h1 = H + 2 * dw, H + 2 * dw + 1
        a(f"""
        v_lshlrev_b32 v{h0}, 16, v{x}
        v_and_b32 v{h1}, s36, v{x}
        v_sub_f32 v84, v{h0}, v10
        v_sub_f32 v85, v{h1}, v10
        v_cvt_pk_bf16_f32 v86, v84, v85
        v_lshlrev_b32 v84, 16, v86
        v_and_b32 v85, s36, v86
        v_mul_f32 v86, v84, v13
        v_mul_f32 v87, v85, v13
        v_fma_f32 v88, -v86, v11, v84
        v_fma_f32 v89, -v87, v11, v85
        v_fma_f32 v86, v88, v13, v86
        v_fma_f32 v87, v89, v13, v87
        v_cvt_pk_bf16_f32 v86, v86, v87     ; u (bf16 x2)
        v_lshlrev_b32 v84, 16, v86
        v_and_b32 v85, s36, v86
        v_lshlrev_b32 v86, 16, v{d}
        v_and_b32 v87, s36, v{d}
        v_mul_f32 v84, v84, v86
        v_mul_f32 v85, v85, v87
        v_cvt_pk_bf16_f32 v86, v84, v85     ; u*D
        v_lshlrev_b32 v84, 16, v86
        v_and_b32 v85, s36, v86
        v_lshlrev_b32 v86, 16, v{y}
        v_and_b32 v87, s36, v{y}
        v_add_f32 v84, v84, v86
        v_add_f32 v85, v85, v87
        v_cvt_pk_bf16_f32 v86, v84, v85     ; y + u*D
        v_lshlrev_b32 v84, 16, v86
        v_and_b32 v85, s36, v86
        v_add_f32 v84, v84, v{h0}
        v_add_f32 v85, v85, v{h1}
        v_cvt_pk_bf16_f32 v{x}, v84, v85
        v_lshlrev_b32 v{h0}, 16, v{x}
        v_and_b32 v{h1}, s36, v{x}
        """)
        if dw % 2 == 1:
            m = dw // 2
            a(f"buffer_store_dwordx2 v[{X+2*m}:{X+2*m+1}], v7, s[20:23], 0 offen offset:{64*m}")
    st.stamp()
    RED = NW * 1536
    def reduce(dst, slot):
        a(f"""
        s_nop 1
        v_add_f32_dpp v85, v84, v84 row_ror:8 row_mask:0xf bank_mask:0xf
        v_mov_b32 v84, v85
        s_nop 1
        v_permlane32_swap_b32 v84, v85
        s_nop 1
        v_add_f32 v84, v84, v85
        v_mov_b32 v85, v84
        s_nop 1
        v_permlane16_swap_b32 v84, v85
        s_nop 1
        v_add_f32 v84, v84, v85
        ds_write_b32 v14, v84 offset:{RED + 256*slot}
        s_waitcnt lgkmcnt(0)
        s_barrier
        ds_read_b128 v[84:87], v15 offset:{RED + 256*slot}
        ds_read_b64 v[88:89], v15 offset:{RED + 256*slot + 16}
        s_waitcnt lgkmcnt(0)
        v_add_f32 v84, v84, v85
        v_add_f32 v86, v86, v87
        v_add_f32 v88, v88, v89
        v_add_f32 v85, v84, v86
        v_add_f32 v85, v85, v88
        v_mul_f32 v84, s37, v85
        v_fma_f32 v86, -v84, s38, v85
        v_fma_f32 {dst}, v86, s37, v84
        """)
    NH = 4 * NM
    a(f"v_add_f32 v84, v{H}, v{H+1}")
    a(f"v_add_f32 v85, v{H+2}, v{H+3}")
    for k in range(4, NH, 2):
        a(f"v_add_f32 v84, v84, v{H+k}")
        a(f"v_add_f32 v85, v85, v{H+k+1}")
    a("v_add_f32 v84, v84, v85")
    reduce("v90", 0)
    a(f"v_sub_f32 v86, v{H}, v90")
    a(f"v_sub_f32 v87, v{H+1}, v90")
    a("v_mul_f32 v84, v86, v86")
    a("v_mul_f32 v85, v87, v87")
    for k in range(2, NH, 2):
        a(f"v_sub_f32 v86, v{H+k}, v90")
        a(f"v_sub_f32 v87, v{H+k+1}, v90")
        a("v_fma_f32 v84, v86, v86, v84")
        a("v_fma_f32 v85, v87, v87, v85")
    a("v_add_f32 v84, v84, v85")
    reduce("v91", 1)
    st.stamp()
    a(f"""
    v_cvt_pk_bf16_f32 v84, v90, v91
    v_lshlrev_b32 v90, 16, v84          ; m_b
    v_and_b32 v91, s36, v84
    v_add_f32 v91, s39, v91
    v_cvt_pk_bf16_f32 v84, v91, v91
    v_lshlrev_b32 v91, 16, v84
    v_sqrt_f32 v91, v91
    s_nop 0
    v_cvt_pk_bf16_f32 v84, v91, v91
    v_lshlrev_b32 v91, 16, v84          ; s
    v_rcp_f32 v92, v91
    v_and_b32 v85, 15, v6               ; r
    v_lshrrev_b32 v84, 2, v85
    v_sub_u32 v84, 4, v84
    v_and_b32 v84, 3, v84
    v_and_b32 v86, 3, v4
    v_xor_b32 v84, v84, v86
    v_lshlrev_b32 v84, 4, v84
    v_lshl_add_u32 v93, v85, 6, v84
    v_lshrrev_b32 v86, 2, v4
    v_lshl_add_u32 v93, v86, 3, v93
    s_lshr_b32 s42, s2, 1
    s_mul_i32 s42, s42, 18432
    s_mul_i32 s43, s3, 3072
    s_add_u32 s42, s42, s43
    """)
    for m in range(NM):
        for k in range(2):
            dw = 2 * m + k
            h0, h1 = H + 2 * dw, H + 2 * dw + 1
            a(f"""
            v_sub_f32 v{h0}, v{h0}, v90
            v_sub_f32 v{h1}, v{h1}, v90
            v_cvt_pk_bf16_f32 v84, v{h0}, v{h1}
            v_lshlrev_b32 v{h0}, 16, v84
            v_and_b32 v{h1}, s36, v84
            v_mul_f32 v84, v{h0}, v92
            v_mul_f32 v85, v{h1}, v92
            v_fma_f32 v86, -v84, v91, v{h0}
            v_fma_f32 v87, -v85, v91, v{h1}
            v_fma_f32 v84, v86, v92, v84
            v_fma_f32 v85, v87, v92, v85
            v_cvt_pk_bf16_f32 v{Y+dw}, v84, v85
            """)
        a(f"buffer_store_dwordx2 v[{Y+2*m}:{Y+2*m+1}], v93, s[24:27], s42 offen offset:{1024*m}")
    st.stamp()
    if prof: a("s_waitcnt vmcnt(0)")
    st.stamp()
    st.dump(6, 3, 6)
    a.label(f"{name}_end")
    a("s_endpgm")
    return kernel_desc(name, 96, sgpr=102)
```

```python
from gen_common import *
from gen_ln import ln_body
from gen_kgen import kgen_body, KG_LDS

PRE_LDS = 53760
PRE_GRID = 576 + 64

def pre_kernel(a, name, prof=False):
    kernel_header(a, name)
    a(f"s_cmp_ge_u32 s2, {PRE_GRID}")
    a(f"s_cbranch_scc1 {name}_end")
    a("s_cmp_ge_u32 s2, 64")
    a(f"s_cbranch_scc1 {name}_kg")
    a("""
    v_lshrrev_b32 v1, 6, v0
    s_nop 0
    v_readfirstlane_b32 s3, v1
    v_and_b32 v0, 63, v0
    s_and_b32 s4, s2, 7
    s_lshr_b32 s2, s2, 3
    s_lshl_b32 s4, s4, 3
    s_add_u32 s2, s2, s4
    s_lshl_b32 s2, s2, 2
    s_add_u32 s2, s2, s3
    s_mul_i32 s26, s3, 9472
    """)
    ln_body(a, 1, name + "_ln")
    a(f"s_branch {name}_end")
    a.label(f"{name}_kg")
    a("s_sub_u32 s2, s2, 64")
    kgen_body(a, name, 2, prof)
    a.label(f"{name}_end")
    a("s_endpgm")
    return kernel_desc(name, 144, sgpr=102)
```

```python
import sys
from gen_common import *
from gen_ln import ln_kernel
from gen_kgen import KG_LDS
from gen_conv2 import conv_kernel, CONV_LDS, CONV_GRID
from gen_gemm1 import gemm1_kernel, G1_LDS, FUSE
from gen_pre import pre_kernel, PRE_LDS, PRE_GRID
from gen_ln2 import ln2_kernel, LN2_LDS, LN2_BLOCK, LN2_GRID
from gen_gemm2 import gemm2_kernel, G2_LDS

import os
PROF = bool(os.environ.get('PROF'))
def main(out):
    hdr = open("sequential_preLN__ssm_conv_s4__glu_gated_swiglu__prompt.s.ref").read().split("; Override launch geometry")[0]
    a = Asm()
    descs = []
    launches = [
        ("pre_kernel", PRE_GRID, 256, PRE_LDS),
        ("conv_kernel", CONV_GRID, 256, CONV_LDS),
        *([] if FUSE else [("ln2_kernel", LN2_GRID, LN2_BLOCK, LN2_LDS)]),
        ("gemm1_kernel", 256, 512, G1_LDS),
        ("gemm2_kernel", 256, 512, G2_LDS),
    ]
    descs.append(pre_kernel(a, "pre_kernel", prof=PROF))
    descs.append(conv_kernel(a, "conv_kernel", prof=PROF))
    if not FUSE: descs.append(ln2_kernel(a, "ln2_kernel", prof=PROF))
    descs.append(gemm1_kernel(a, "gemm1_kernel", prof=PROF))
    descs.append(gemm2_kernel(a, "gemm2_kernel", prof=PROF))
    s = hdr
    for n, g, b, l in launches:
        s += f"; @launch kernel={n} grid=({g},1,1) block=({b},1,1) lds={l}\n"
    s += '.amdgcn_target "amdgcn-amd-amdhsa--gfx950"\n.text\n'
    s += a.text()
    s += '.section .rodata,"a"\n'
    for d in descs:
        s += ".p2align 6\n" + d
    open(out, "w").write(s)
main(sys.argv[1] if len(sys.argv) > 1 else "sequential_preLN__ssm_conv_s4__glu_gated_swiglu__prompt.s")
```

```python
from gen_common import *
from gen_gemm2 import w2pack_body

CSTR = 4384
KB = 8 * CSTR
CONV_LDS = 40960
CONV_GRID = 576 + 144

def conv_kernel(a, name, prof=False):
    st = Stamps(a, prof, kid=0, vr=160)
    kernel_header(a, name)
    a(f"s_cmp_ge_u32 s2, {CONV_GRID}")
    a(f"s_cbranch_scc1 {name}_end")
    a("s_cmp_ge_u32 s2, 576")
    a(f"s_cbranch_scc0 {name}_ch")
    a("s_sub_u32 s2, s2, 576")
    w2pack_body(a, name + "_wp0", 2)
    a(f"s_branch {name}_end")
    a.label(f"{name}_ch")
    st.stamp()
    a(f"s_load_dwordx2 s[22:23], s[0:1], {ARG['ws']}")
    a("""
    v_lshrrev_b32 v1, 6, v0
    v_lshlrev_b32 v6, 4, v0             ; tid*16
    v_and_b32 v2, 63, v0
    v_readfirstlane_b32 s3, v1          ; wave
    v_lshlrev_b32 v3, 4, v2             ; lane*16
    s_waitcnt lgkmcnt(0)
    """)
    srd(a, 8, 22, 576 * TS, WS_UT)
    srd(a, 12, 22, 576 * KROW, WS_KEXP)
    srd(a, 16, 22, 576 * TS, WS_YT)
    a(f"""
    s_mul_i32 s28, s2, {TS}
    s_mul_i32 s29, s2, {KROW}
    s_lshl_b32 s30, s3, 10              ; wave*1024
    s_add_u32 m0, s30, {7*CSTR + 256}
    s_add_u32 s31, s28, s30
    buffer_load_dwordx4 v3, s[8:11], s31 offen lds
    s_add_u32 m0, s30, {KB}
    s_add_u32 s31, s29, s30
    buffer_load_dwordx4 v3, s[12:15], s31 offen lds
    s_lshl_b32 s26, s2, 2
    s_add_u32 s26, s22, s26
    s_addc_u32 s27, s23, 0
    s_load_dword s32, s[26:27], {WS_KSCALE}
    v_mov_b32 v36, 0
    v_mov_b32 v37, 0
    v_mov_b32 v38, 0
    v_mov_b32 v39, 0
    v_cmp_gt_u32 vcc, 18, v0
    s_and_saveexec_b64 s[24:25], vcc
    ds_write_b128 v6, v[36:39] offset:{7*CSTR-32}
    v_cmp_gt_u32 vcc, 16, v0
    s_and_saveexec_b64 s[24:25], vcc
    ds_write_b128 v6, v[36:39] offset:{KB + 4096}
    s_mov_b64 exec, -1
    v_and_b32 v40, 15, v2               ; n / j
    v_lshrrev_b32 v41, 4, v2            ; g
    v_sub_u32 v42, v41, v40
    v_lshlrev_b32 v42, 4, v42
    v_add_u32 v4, {KB + 240}, v42       ; v4 = kaddr
    v_and_b32 v43, 3, v40
    v_lshrrev_b32 v44, 3, v40
    v_lshl_add_u32 v43, v44, 2, v43     ; p
    v_lshrrev_b32 v45, 2, v40
    v_xor_b32 v45, v45, v44
    v_and_b32 v45, 1, v45               ; q
    v_mul_u32_u24 v43, {CSTR}, v43
    v_lshl_add_u32 v43, v45, 8, v43
    v_lshl_add_u32 v5, v41, 4, v43      ; v5 = uaddr
    v_lshrrev_b32 v44, 1, v41
    v_xor_b32 v45, v41, v44
    v_and_b32 v45, 1, v45
    v_lshlrev_b32 v46, 4, v40
    v_lshl_add_u32 v46, v45, 8, v46
    v_lshl_add_u32 v7, v44, 3, v46
    s_waitcnt vmcnt(1) lgkmcnt(0)
    s_barrier
    """)
    st.stamp()
    for k in range(2):
        W = 48 + 8 * k
        if k == 1:
            a("v_cmp_gt_u32 vcc, 16, v0")
            a("s_and_saveexec_b64 s[24:25], vcc")
            a(f"s_cbranch_execz {name}_bdone")
        a(f"ds_read_b128 v[{W}:{W+3}], v6 offset:{7*CSTR - 16 + 4096*k}")
        a(f"ds_read_b128 v[{W+4}:{W+7}], v6 offset:{7*CSTR + 4096*k}")
        a("s_waitcnt lgkmcnt(0)")
        for p in range(7):
            s = p + 1
            dst = 8 + 4 * p
            j0 = s // 2
            if s % 2 == 1:
                for q in range(4):
                    a(f"v_alignbit_b32 v{dst+q}, v{W+j0+q+1}, v{W+j0+q}, 16")
                a(f"ds_write_b128 v6, v[{dst}:{dst+3}] offset:{p*CSTR + 4096*k}")
            elif j0 % 2 == 0:
                a(f"ds_write_b128 v6, v[{W+j0}:{W+j0+3}] offset:{p*CSTR + 4096*k}")
            else:
                for q in range(4):
                    a(f"v_mov_b32 v{dst+q}, v{W+j0+q}")
                a(f"ds_write_b128 v6, v[{dst}:{dst+3}] offset:{p*CSTR + 4096*k}")
    a.label(f"{name}_bdone")
    a("""
    s_mov_b64 exec, -1
    s_waitcnt vmcnt(0) lgkmcnt(0)
    s_barrier
    """)
    st.stamp()
    a(f"""
    s_lshr_b32 s4, s3, 1
    s_and_b32 s5, s2, 1
    s_cmp_lg_u32 s4, s5
    s_cbranch_scc1 {name}_fin
    s_and_b32 s4, s3, 1
    s_cmp_eq_u32 s4, 1
    s_cbranch_scc1 {name}_mB
    """)
    for path, tiles in (("A", [0, 3, 4, 7]), ("B", [1, 2, 5, 6])):
        if path == "B":
            a.label(f"{name}_mB")
        ACC = 16
        FR = [32, 96]
        nf = max(tiles) + 1
        for r in range(16):
            a(f"v_mov_b32 v{ACC+r}, 0")
        lg = Cnt(a, "lgkmcnt")
        def rd_k(e, g):
            b = FR[e & 1]
            a(f"ds_read_b128 v[{b+4*g}:{b+4*g+3}], v4 offset:{512*(7-g) + 64*(7-e)}")
            lg.issue(("k", e, g))
        def rd_u(e, g):
            b = FR[e & 1]
            a(f"ds_read_b128 v[{b+32+4*g}:{b+32+4*g+3}], v5 offset:{512*g + 64*(7-e)}")
            lg.issue(("u", e, g))
        for g in range(nf):
            rd_k(0, g); rd_u(0, g)
        for e in range(8):
            b = FR[e & 1]
            fill = []
            if e < 7:
                for g in range(nf):
                    fill += [(rd_k, g), (rd_u, g)]
            for ti, tau in enumerate(tiles):
                for gam in range(tau + 1):
                    beta = tau - gam
                    lg.need(("k", e, gam), ("u", e, beta))
                    c = ACC + 4 * ti
                    a(f"v_mfma_f32_16x16x32_f16 v[{c}:{c+3}], v[{b+32+4*beta}:{b+32+4*beta+3}], v[{b+4*gam}:{b+4*gam+3}], v[{c}:{c+3}]")
                    if fill:
                        f, g = fill.pop(0); f(e + 1, g)
        a("s_nop 7")
        for ti, tau in enumerate(tiles):
            c = ACC + 4 * ti
            for r in range(4):
                a(f"v_mul_f32 v{c+r}, s32, v{c+r}")
            a(f"v_cvt_pk_bf16_f32 v{8+2*ti}, v{c}, v{c+1}")
            a(f"v_cvt_pk_bf16_f32 v{9+2*ti}, v{c+2}, v{c+3}")
            a(f"buffer_store_dwordx2 v[{8+2*ti}:{9+2*ti}], v7, s[16:19], s28 offen offset:{512*tau}")
        if path == "A":
            a(f"s_branch {name}_fin")
    a.label(f"{name}_fin")
    st.stamp()
    st.dump(22, 3, 4)
    a.label(f"{name}_end")
    a("s_endpgm")
    return kernel_desc(name, 164, sgpr=102)
```

```python
from gen_common import *
import math

G1_SLOT = 16384 + 2 * 9216
G1_LDS = 4 * G1_SLOT
NST = 18
import os
STMOD = os.environ.get('G1ST', '')
DRY = int(os.environ.get('G1DRY', '0'))

def gemm1_kernel(a, name, exact_round=False, prof=False):
    kernel_header(a, name)
    a("s_cmp_ge_u32 s2, 256")
    a(f"s_cbranch_scc1 {name}_end")
    a(f"s_load_dwordx4 s[4:7], s[0:1], {ARG['w1']}")
    a(f"s_load_dwordx2 s[8:9], s[0:1], {ARG['ws']}")
    a("""
    v_lshrrev_b32 v2, 6, v0
    v_and_b32 v1, 63, v0                ; lane
    s_nop 0
    v_readfirstlane_b32 s3, v2          ; wave
    s_and_b32 s10, s2, 7
    s_lshr_b32 s11, s2, 3
    s_and_b32 s12, s11, 3
    s_lshl_b32 s10, s10, 2
    s_add_u32 s10, s10, s12             ; cb
    s_lshr_b32 s11, s11, 2              ; rb
    s_and_b32 s13, s3, 3                ; wm
    s_waitcnt lgkmcnt(0)
    """)
    srd(a, 16, 8, 2048 * 1152, WS_HN)
    srd(a, 24, 8, 2048 * 9216, WS_HH)
    a("""
    s_cmp_ge_u32 s3, 6
    s_cselect_b32 s20, s6, s4
    s_cselect_b32 s21, s7, s5
    s_and_b32 s21, s21, 0xffff
    """)
    a(f"s_mov_b32 s22, {576*9216}")
    a("s_mov_b32 s23, 0x00020000")
    a(f"""
    v_and_b32 v3, 15, v1                ; l&15
    v_lshrrev_b32 v4, 4, v1             ; g
    v_bfe_u32 v5, v1, 2, 2
    v_sub_u32 v5, 4, v5
    v_and_b32 v5, 3, v5
    v_xor_b32 v5, v5, v4
    v_lshlrev_b32 v5, 4, v5
    v_lshl_add_u32 v2, v3, 6, v5
    s_lshl_b32 s14, s13, 12
    v_add_u32 v6, s14, v2               ; vXa0
    v_add_u32 v7, {2*G1_SLOT}, v6       ; vXa1
    v_lshrrev_b32 v4, 2, v1
    v_mul_u32_u24 v8, 288, v4
    v_and_b32 v5, 3, v1
    v_lshl_add_u32 v8, v5, 3, v8
    s_and_b32 s44, s10, 1
    s_xor_b32 s45, s44, 1
    s_lshl_b32 s45, s45, 8
    v_add_u32 v252, s45, v8             ; vW4a0
    v_add_u32 v253, {2*G1_SLOT}, v252   ; vW4a1
    s_lshl_b32 s45, s44, 5
    s_lshr_b32 s46, s3, 2
    s_lshl_b32 s46, s46, 7
    s_add_u32 s45, s45, s46
    v_add_u32 v8, s45, v8
    v_add_u32 v9, {2*G1_SLOT}, v8       ; vWa1
    """)
    a("s_cmp_ge_u32 s3, 4")
    a(f"s_cbranch_scc1 {name}_p1")
    gemm1_path(a, name, 0, exact_round, prof)
    a(f"s_branch {name}_end")
    a.label(f"{name}_p1")
    gemm1_path(a, name, 1, exact_round, prof)
    a.label(f"{name}_end")
    a("s_endpgm")
    return kernel_desc(name, 256, sgpr=102)

def gemm1_path(a, name, wn, exact_round, prof):
    st = Stamps(a, prof, kid=1)
    NT = 5 if wn == 0 else 4
    T0 = 0 if wn == 0 else 5
    VX = [16, 32]
    VW = 48
    ACC = 88
    nd = 4 if wn == 0 else 5
    lg = Cnt(a, "lgkmcnt"); vm = Cnt(a, "vmcnt")
    def acc(i, j, mat):
        return ACC + ((i * NT + j) * 2 + mat) * 4
    st.stamp()
    if wn == 0:
        a(f"""
        v_lshlrev_b32 v10, 4, v1
        s_lshl_b32 s14, s11, 4
        s_lshl_b32 s15, s13, 2
        s_add_u32 s14, s14, s15
        s_mul_i32 s31, s14, {18*1024}
        s_lshl_b32 s30, s13, 12
        """)
    else:
        a(f"""
        s_and_b32 s14, s3, 1                ; hv
        s_mul_i32 s15, s14, {16*9216}
        s_mul_i32 s31, s10, 288
        s_add_u32 s15, s15, s31
        s_mov_b32 s32, {(1<<32)//18 + 1}
        s_lshr_b32 s33, s13, 1              ; matrix
        s_mul_i32 s30, s33, 9216
        s_mul_i32 s33, s14, 4608
        s_add_u32 s30, s30, s33
        s_add_u32 s30, s30, 16384
        """)
        for i in range(5):
            a(f"""
            v_add_u32 v4, {64*i}, v1
            v_mul_hi_u32 v5, v4, s32            ; row
            v_mul_u32_u24 v15, 18, v5
            v_sub_u32 v4, v4, v15               ; c
            v_mul_u32_u24 v5, 9216, v5
            v_lshl_add_u32 v{10+i}, v4, 4, v5
            v_add_u32 v{10+i}, s15, v{10+i}
            """)
    def dma_piece(s, i):
        slot = s & 3
        if wn == 0:
            a(f"s_add_u32 m0, s30, {slot*G1_SLOT + 1024*i}")
            a(f"s_add_u32 s34, s31, {(i*18 + s)*1024}")
            a(f"buffer_load_dwordx4 v10, s[16:19], s34 offen lds")
        else:
            a(f"s_add_u32 m0, s30, {slot*G1_SLOT + 1024*i}")
            a(f"s_mov_b32 s34, {s*32*9216}")
            if i == 4:
                a("s_mov_b64 exec, 0xffffffff")
            a(f"buffer_load_dwordx4 v{10+i}, s[20:23], s34 offen lds")
            if i == 4:
                a("s_mov_b64 exec, -1")
        vm.issue(("d", s))
    def xread(s, i):
        slot = s & 3
        base = "v6" if slot < 2 else "v7"
        off = (slot & 1) * G1_SLOT
        b = VX[s & 1]
        a(f"ds_read_b128 v[{b+4*i}:{b+4*i+3}], {base} offset:{off + 1024*i}")
        lg.issue(("x", s, i))
    def wread(s, j, mat, h):
        slot = s & 3
        base = "v8" if slot < 2 else "v9"
        if j == 4:
            base = "v252" if slot < 2 else "v253"
        off = (slot & 1) * G1_SLOT + 16384
        r = VW + (j * 2 + mat) * 4 + 2 * h
        o = off + mat * 9216 + (j & 3) * 32 + h * 16 * 288
        a(f"ds_read_b64_tr_b16 v[{r}:{r+1}], {base} offset:{o}")
        lg.issue(("w", s, j, mat, h))
    for s in range(3):
        for i in range(nd):
            dma_piece(s, i)
    for r in range(ACC, ACC + 32 * NT):
        a(f"v_mov_b32 v{r}, 0")
    if DRY:
        a("s_mov_b32 s47, 1")
        a("s_mov_b64 exec, 0")
        a(f"s_branch {name}_epi{wn}")
        a.label(f"{name}_back{wn}")
        a("s_mov_b64 exec, -1")
        a("s_mov_b32 s47, 0")
    vm.need(("d", 0))
    a("s_barrier")
    st.stamp()
    for i in range(4):
        xread(0, i)
    for j in range(NT):
        for mat in range(2):
            for h in range(2):
                wread(0, j, mat, h)
    for s in range(NST):
        nxt = s + 1 < NST
        if nxt:
            vm.need(("d", s + 1))
            a("s_barrier")
        if s in (1, 5, 9, 13, 17):
            st.stamp()
        b = VX[s & 1]
        fill = []
        if nxt:
            fill += [("x", i) for i in range(4)]
        if s + 3 < NST:
            dm = [("d", i) for i in range(nd)]
            f2 = []
            while fill or dm:
                if fill: f2.append(fill.pop(0))
                if dm: f2.append(dm.pop(0))
            fill = f2
        pend = []
        groups = [(j, mat) for j in range(NT) for mat in range(2)]
        for gi, (j, mat) in enumerate(groups):
            w = VW + (j * 2 + mat) * 4
            for i in range(4):
                lg.need(("w", s, j, mat, 0), ("w", s, j, mat, 1), ("x", s, i))
                c = acc(i, j, mat)
                a(f"v_mfma_f32_16x16x32_bf16 v[{c}:{c+3}], v[{w}:{w+3}], v[{b+4*i}:{b+4*i+3}], v[{c}:{c+3}]")
                if pend:
                    wread(*pend.pop(0))
                elif fill:
                    k, idx = fill.pop(0)
                    if k == "x": xread(s + 1, idx)
                    else: dma_piece(s + 3, idx)
            if nxt:
                pend += [(s + 1, j, mat, 0), (s + 1, j, mat, 1)]
        while pend:
            wread(*pend.pop(0))
        while fill:
            k, idx = fill.pop(0)
            if k == "x": xread(s + 1, idx)
            else: dma_piece(s + 3, idx)
    st.stamp()
    a.label(f"{name}_epi{wn}")
    a(f"""
    s_lshl_b32 s14, s11, 4
    s_lshl_b32 s15, s13, 2
    s_add_u32 s14, s14, s15
    s_mul_i32 s35, s14, {144*1024}
    s_mul_i32 s36, s10, 9
    s_add_u32 s39, s36, s44
    s_add_u32 s39, s39, {4*wn}
    s_lshl_b32 s39, s39, 9
    s_add_u32 s39, s39, s35
    s_xor_b32 s40, s44, 1
    s_lshl_b32 s40, s40, 3
    s_add_u32 s40, s40, s36
    s_lshr_b32 s40, s40, 1
    s_lshl_b32 s40, s40, 10
    s_lshl_b32 s41, s44, 3
    s_add_u32 s40, s40, s41
    s_add_u32 s40, s40, s35
    s_mov_b32 s42, {f32hex(-math.log2(math.e))}
    s_mov_b32 s43, {f32hex(-math.log2(math.e))}
    s_nop 7
    """)
    def silu_multi(items):
        G = [(acc(i, j, 0), acc(i, j, 1), T, D) for (i, j, T, D) in items]
        for g, u, T, D in G:
            a(f"v_pk_mul_f32 v[{T}:{T+1}], v[{g}:{g+1}], s[42:43]")
            a(f"v_pk_mul_f32 v[{T+2}:{T+3}], v[{g+2}:{g+3}], s[42:43]")
        for g, u, T, D in G:
            for r in range(4): a(f"v_exp_f32 v{T+r}, v{T+r}")
        for g, u, T, D in G:
            a(f"v_pk_mul_f32 v[{g}:{g+1}], v[{g}:{g+1}], v[{u}:{u+1}]")
            a(f"v_pk_mul_f32 v[{g+2}:{g+3}], v[{g+2}:{g+3}], v[{u+2}:{u+3}]")
        for g, u, T, D in G:
            a(f"v_pk_add_f32 v[{T}:{T+1}], v[{T}:{T+1}], 1.0 op_sel_hi:[1,0]")
            a(f"v_pk_add_f32 v[{T+2}:{T+3}], v[{T+2}:{T+3}], 1.0 op_sel_hi:[1,0]")
        for g, u, T, D in G:
            for r in range(4): a(f"v_rcp_f32 v{T+r}, v{T+r}")
        a("s_nop 0")
        for g, u, T, D in G:
            a(f"v_pk_mul_f32 v[{T}:{T+1}], v[{g}:{g+1}], v[{T}:{T+1}]")
            a(f"v_pk_mul_f32 v[{T+2}:{T+3}], v[{g+2}:{g+3}], v[{T+2}:{T+3}]")
        for g, u, T, D in G:
            a(f"v_cvt_pk_bf16_f32 v{D}, v{T}, v{T+1}")
            a(f"v_cvt_pk_bf16_f32 v{D+1}, v{T+2}, v{T+3}")
    k = 0
    for p in range(2):
        for i in range(4):
            T = 16 + 16 * (k & 3); k += 1
            silu_multi([(i, 2 * p, T, T + 8), (i, 2 * p + 1, T + 4, T + 10)])
            a(f"s_add_u32 s41, s39, {i*144*1024 + p*1024}")
            a(f"buffer_store_dwordx4 v[{T+8}:{T+11}], v2, s[24:27], s41 offen")
    if wn == 0:
        for i2 in range(2):
            T = 16 + 16 * (k & 3); k += 1
            silu_multi([(2 * i2, 4, T, T + 8), (2 * i2 + 1, 4, T + 4, T + 10)])
            for q in range(2):
                a(f"s_add_u32 s41, s40, {(2*i2+q)*144*1024}")
                a(f"buffer_store_dwordx2 v[{T+8+2*q}:{T+9+2*q}], v2, s[24:27], s41 offen")
    if DRY:
        a("s_cmp_eq_u32 s47, 1")
        a(f"s_cbranch_scc1 {name}_back{wn}")
    st.stamp()
    if prof:
        a("s_waitcnt vmcnt(0)")
    st.stamp()
    st.dump(8, 3, 8)
```

```python
from gen_common import *

G2_LDS = 163840
NCH = 18
import os
DEPTH = int(os.environ.get('G2DEPTH', '3'))
DMA = int(os.environ.get('G2DMA', '1'))

def gemm2_kernel(a, name, prof=False):
    st = Stamps(a, prof, kid=2)
    kernel_header(a, name)
    a("s_cmp_ge_u32 s2, 256")
    a(f"s_cbranch_scc1 {name}_end")
    a(f"s_load_dwordx2 s[6:7], s[0:1], {ARG['out']}")
    a(f"s_load_dwordx2 s[8:9], s[0:1], {ARG['ws']}")
    a("""
    v_lshrrev_b32 v2, 6, v0
    v_and_b32 v1, 63, v0                ; lane
    s_nop 0
    v_readfirstlane_b32 s3, v2          ; wave
    s_and_b32 s10, s2, 7                ; xcd
    s_lshr_b32 s11, s2, 3               ; j
    s_and_b32 s12, s11, 3
    s_and_b32 s13, s10, 1
    s_lshl_b32 s13, s13, 2
    s_add_u32 s12, s12, s13             ; cbk = 4*(x&1) + (j&3)
    s_lshr_b32 s11, s11, 2
    s_lshr_b32 s10, s10, 1
    s_lshl_b32 s10, s10, 3
    s_add_u32 s11, s11, s10             ; rbk = 8*(x>>1) + (j>>2)
    s_waitcnt lgkmcnt(0)
    """)
    st.stamp()
    srd(a, 16, 8, 2048 * 9216, WS_HH)
    srd(a, 20, 8, 8 * 144 * 4608, WS_W2P)
    srd(a, 24, 6, 2048 * 1152)
    srd(a, 28, 8, 2048 * 1152, WS_H)
    a(f"""
    v_and_b32 v3, 15, v1
    v_lshrrev_b32 v4, 4, v1             ; g
    v_bfe_u32 v5, v1, 2, 2
    v_sub_u32 v5, 4, v5
    v_and_b32 v5, 3, v5
    v_xor_b32 v5, v5, v4
    v_lshlrev_b32 v5, 4, v5
    v_lshl_add_u32 v6, v3, 6, v5
    v_lshlrev_b32 v8, 4, v1             ; lane*16
    s_mul_i32 s33, s11, {4*144*1024}
    s_lshl_b32 s14, s3, 10
    s_add_u32 s33, s33, s14
    v_lshlrev_b32 v7, 3, v4
    v_add_u32 v7, v7, v3
    v_lshlrev_b32 v7, 4, v7
    v_cmp_gt_u32 vcc, 8, v3
    s_mov_b64 s[48:49], vcc
    s_mul_i32 s34, s12, {144*4096}
    s_lshl_b32 s14, s3, 12
    s_add_u32 s34, s34, s14
    s_lshl_b32 s37, s12, 3
    s_add_u32 s37, s37, s3
    s_mul_i32 s37, s37, 9216
    s_add_u32 s37, s37, {8*144*4096}    ; T4 base
    """)
    ACC = 64
    if DMA:
        SL = 8192
        a(f"""
        s_mul_i32 s46, s3, {2*SL + 2048}
        v_add_u32 v10, s46, v6
        v_add_u32 v11, s46, v8
        v_and_b32 v12, 7, v3
        v_lshl_add_u32 v12, v4, 3, v12
        v_lshlrev_b32 v12, 4, v12
        v_add_u32 v12, s46, v12
        """)
        FB = [144, 180]
        vm = Cnt(a, "vmcnt"); lg = Cnt(a, "lgkmcnt")
        def dma(i, k):
            sl = (i & 1) * SL
            if k < 4:
                a(f"s_add_u32 m0, s46, {sl + 1024*k}")
                a(f"s_add_u32 s35, s33, {(k*144 + i*8)*1024}")
                a(f"buffer_load_dwordx4 v8, s[16:19], s35 offen lds")
            elif k < 8:
                n = k - 4
                a(f"s_add_u32 m0, s46, {sl + 4096 + 1024*n}")
                a(f"s_add_u32 s35, s34, {i*8*4096 + n*1024}")
                a(f"buffer_load_dwordx4 v8, s[20:23], s35 offen lds")
            else:
                if i & 1: return
                a(f"s_add_u32 m0, s46, {2*SL + ((i>>1)&1)*1024}")
                a(f"s_add_u32 s35, s37, {(i>>1)*1024}")
                a(f"buffer_load_dwordx4 v8, s[20:23], s35 offen lds")
            vm.issue(("d", i))
        def rd(i):
            sl = (i & 1) * SL; b = FB[i & 1]
            for q in range(4):
                a(f"ds_read_b128 v[{b+4*q}:{b+4*q+3}], v10 offset:{sl + 1024*q}"); lg.issue(("r", i))
            for n in range(4):
                a(f"ds_read_b128 v[{b+16+4*n}:{b+16+4*n+3}], v11 offset:{sl + 4096 + 1024*n}"); lg.issue(("r", i))
            a(f"ds_read_b128 v[{b+32}:{b+35}], v12 offset:{2*SL + ((i>>1)&1)*1024 + (i&1)*512}"); lg.issue(("r", i))
        for i in range(2):
            for k in range(9): dma(i, k)
        for r in range(ACC, ACC + 80):
            a(f"v_mov_b32 v{r}, 0")
        vm.need(("d", 0)); rd(0)
        for i in range(NCH):
            b = FB[i & 1]
            if i in (0, 1, 6, 12): st.stamp()
            lg.need(("r", i))
            pieces = [k for k in range(9)] if i + 2 < NCH else []
            cnt = 0
            for n in range(5):
                for q in range(4):
                    c = ACC + (q * 5 + n) * 4
                    a(f"v_mfma_f32_16x16x32_bf16 v[{c}:{c+3}], v[{b+16+4*n}:{b+16+4*n+3}], v[{b+4*q}:{b+4*q+3}], v[{c}:{c+3}]")
                    if pieces and cnt < 9:
                        dma(i + 2, pieces.pop(0))
                    cnt += 1
                    if cnt == 12 and i + 1 < NCH:
                        vm.need(("d", i + 1)); rd(i + 1)
        a("s_barrier")
    else:
        gemm2_vgpr_loop(a, st, ACC)
    st.stamp()
    a("s_mov_b32 s38, 0xffff0000")
    a("s_movk_i32 s47, 72")
    for k in range(3):
        a(f"""
        s_add_u32 s39, s3, {8*k}
        s_mul_i32 s40, s39, 52
        s_lshr_b32 s40, s40, 8              ; q = T/5
        s_mul_i32 s41, s40, 5
        s_sub_u32 s41, s39, s41             ; n
        s_lshl_b32 s42, s11, 6
        s_lshl_b32 s40, s40, 4
        s_add_u32 s42, s42, s40
        v_add_u32 v7, s42, v3
        v_mul_u32_u24 v7, 1152, v7
        s_mul_i32 s42, s12, 144
        s_lshl_b32 s43, s41, 5
        s_add_u32 s42, s42, s43
        v_lshrrev_b32 v9, 4, v1
        v_lshl_add_u32 v7, v9, 3, v7
        v_add_u32 v{150+k}, s42, v7
        s_lshl_b32 s43, s41, 4
        v_lshl_add_u32 v9, v9, 2, s43
        v_cmp_gt_u32 s[{50+2*k}:{51+2*k}], 72, v9
        """.replace("v_cmp_gt_u32 s[", "v_cmp_lt_u32 s[").replace("], 72, v9", "], v9, s47"))
        if k == 0:
            pass
    s_ = ""
    a(f"""
    s_mul_i32 s46, s3, 20480
    v_lshl_add_u32 v4, v1, 4, s46
    s_cmp_ge_u32 s3, 4
    s_cselect_b64 s[54:55], 0, s[54:55]
    """)
    for k in range(3):
        a(f"s_mov_b64 exec, s[{50+2*k}:{51+2*k}]")
        if k == 2:
            a(f"s_cbranch_execz {name}_nold")
        a(f"buffer_load_dwordx2 v[{154+2*k}:{155+2*k}], v{150+k}, s[28:31], 0 offen")
    a.label(f"{name}_nold")
    a("s_mov_b64 exec, -1")
    for t in range(20):
        c = ACC + 4 * t
        a(f"ds_write_b128 v4, v[{c}:{c+3}] offset:{1024*t}")
    a("s_waitcnt lgkmcnt(0)")
    a("s_barrier")
    st.stamp()
    a(f"""
    v_lshlrev_b32 v4, 4, v0             ; tid*16
    v_add_u32 v5, {4*20480}, v4
    v_add_u32 v6, {3*20480}, v4
    v_add_u32 v7, {7*20480}, v4
    """)
    for k in range(3):
        if k == 2:
            a("s_cmp_ge_u32 s3, 4")
            a(f"s_cbranch_scc1 {name}_fin")
        R = 16 + 32 * (k & 1)
        for w in range(8):
            if (w & 3) == 3:
                base, off = ("v6" if w < 4 else "v7"), 8192 * k
            else:
                base, off = ("v4" if w < 4 else "v5"), (w & 3) * 20480 + 8192 * k
            a(f"ds_read_b128 v[{R+4*w}:{R+3+4*w}], {base} offset:{off}")
        a("s_waitcnt lgkmcnt(0)")
        for r in range(0, 4, 2):
            a(f"v_pk_add_f32 v[{R+r}:{R+r+1}], v[{R+r}:{R+r+1}], v[{R+4+r}:{R+5+r}]")
            a(f"v_pk_add_f32 v[{R+8+r}:{R+9+r}], v[{R+8+r}:{R+9+r}], v[{R+12+r}:{R+13+r}]")
            a(f"v_pk_add_f32 v[{R+16+r}:{R+17+r}], v[{R+16+r}:{R+17+r}], v[{R+20+r}:{R+21+r}]")
            a(f"v_pk_add_f32 v[{R+24+r}:{R+25+r}], v[{R+24+r}:{R+25+r}], v[{R+28+r}:{R+29+r}]")
        for r in range(0, 4, 2):
            a(f"v_pk_add_f32 v[{R+r}:{R+r+1}], v[{R+r}:{R+r+1}], v[{R+8+r}:{R+9+r}]")
            a(f"v_pk_add_f32 v[{R+16+r}:{R+17+r}], v[{R+16+r}:{R+17+r}], v[{R+24+r}:{R+25+r}]")
        for r in range(0, 4, 2):
            a(f"v_pk_add_f32 v[{R+r}:{R+r+1}], v[{R+r}:{R+r+1}], v[{R+16+r}:{R+17+r}]")
        h = 154 + 2 * k
        a(f"""
        v_cvt_pk_bf16_f32 v{R+4}, v{R}, v{R+1}
        v_cvt_pk_bf16_f32 v{R+5}, v{R+2}, v{R+3}
        v_lshlrev_b32 v{R}, 16, v{R+4}
        v_and_b32 v{R+1}, s38, v{R+4}
        v_lshlrev_b32 v{R+2}, 16, v{R+5}
        v_and_b32 v{R+3}, s38, v{R+5}
        """)
        if k == 0:
            a("s_waitcnt vmcnt(0)")
        a(f"""
        v_lshlrev_b32 v{R+4}, 16, v{h}
        v_and_b32 v{R+5}, s38, v{h}
        v_lshlrev_b32 v{R+6}, 16, v{h+1}
        v_and_b32 v{R+7}, s38, v{h+1}
        v_pk_add_f32 v[{R}:{R+1}], v[{R}:{R+1}], v[{R+4}:{R+5}]
        v_pk_add_f32 v[{R+2}:{R+3}], v[{R+2}:{R+3}], v[{R+6}:{R+7}]
        v_cvt_pk_bf16_f32 v{R+8}, v{R}, v{R+1}
        v_cvt_pk_bf16_f32 v{R+9}, v{R+2}, v{R+3}
        s_mov_b64 exec, s[{50+2*k}:{51+2*k}]
        buffer_store_dwordx2 v[{R+8}:{R+9}], v{150+k}, s[24:27], 0 offen
        s_mov_b64 exec, -1
        """)
    a.label(f"{name}_fin")
    st.stamp()
    st.dump(8, 3, 8)
    a.label(f"{name}_end")
    a("s_endpgm")
    return kernel_desc(name, 256, sgpr=102)


def w2pack_body(a, name, sblk):
    a(f"s_load_dwordx2 s[4:5], s[0:1], {ARG['w2']}")
    a(f"s_load_dwordx2 s[8:9], s[0:1], {ARG['ws']}")
    a("""
    v_lshrrev_b32 v2, 6, v0
    v_and_b32 v1, 63, v0
    s_nop 0
    v_readfirstlane_b32 s3, v2
    v_lshlrev_b32 v8, 4, v1
    s_waitcnt lgkmcnt(0)
    """)
    srd(a, 16, 4, 4608 * 1152)
    srd(a, 20, 8, 8 * 144 * 4608, WS_W2P)
    a(f"""
    s_mul_i32 s30, s3, 9216
    s_mul_i32 s31, s{sblk}, 36864
    s_add_u32 s31, s31, s30
    """)
    for i in range(9):
        a(f"s_add_u32 m0, s30, {1024*i}")
        a(f"s_add_u32 s32, s31, {1024*i}")
        a(f"buffer_load_dwordx4 v8, s[16:19], s32 offen lds")
    a(f"""
    v_lshrrev_b32 v4, 2, v1
    v_mul_u32_u24 v9, 1152, v4
    v_and_b32 v5, 3, v1
    v_lshl_add_u32 v9, v5, 3, v9
    s_mul_i32 s33, s3, 288
    v_add_u32 v9, s33, v9
    s_mul_i32 s34, s3, {2*144*4096}
    s_lshl_b32 s35, s{sblk}, 12
    s_add_u32 s34, s34, s35
    s_lshl_b32 s36, s3, 4
    s_and_b32 s35, s{sblk}, 7
    s_add_u32 s36, s36, s35
    s_mul_i32 s36, s36, 9
    s_lshr_b32 s35, s{sblk}, 4
    s_add_u32 s36, s36, s35
    s_lshl_b32 s36, s36, 10
    s_bfe_u32 s35, s{sblk}, 0x10003
    s_lshl_b32 s35, s35, 9
    s_add_u32 s36, s36, s35
    s_add_u32 s36, s36, {8*144*4096}
    v_and_b32 v3, 15, v1
    v_cmp_gt_u32 vcc, 8, v3
    s_waitcnt vmcnt(0)
    s_barrier
    """)
    for c in range(2):
        for n in range(5):
            r = 16 + 4 * (c * 5 + n)
            o = c * 144 + n * 32
            a(f"ds_read_b64_tr_b16 v[{r}:{r+1}], v9 offset:{o}")
            a(f"ds_read_b64_tr_b16 v[{r+2}:{r+3}], v9 offset:{o + 16*1152}")
    a("s_waitcnt lgkmcnt(0)")
    a("""
    v_lshrrev_b32 v4, 4, v1
    v_lshl_add_u32 v7, v4, 3, v3
    v_lshlrev_b32 v7, 4, v7
    """)
    for c in range(2):
        for n in range(5):
            r = 16 + 4 * (c * 5 + n)
            a(f"s_add_u32 s35, s34, {c*144*4096}" if n < 4 else f"s_add_u32 s35, s36, {c*8*9216}")
            if n == 4:
                a("s_mov_b64 exec, vcc")
                a(f"buffer_store_dwordx4 v[{r}:{r+3}], v7, s[20:23], s35 offen")
                a("s_mov_b64 exec, -1")
            else:
                a(f"buffer_store_dwordx4 v[{r}:{r+3}], v8, s[20:23], s35 offen offset:{(n%4)*1024}")


def gemm2_vgpr_loop(a, st, ACC):
    FB = [144, 180, 216]
    vm = Cnt(a, "vmcnt")
    def ldx(i, q):
        r = FB[i % DEPTH] + 4 * q
        a(f"s_add_u32 s35, s33, {(q*144 + i*8)*1024}")
        a(f"buffer_load_dwordx4 v[{r}:{r+3}], v6, s[16:19], s35 offen")
        vm.issue(("x", i, q))
    def ldw(i, n):
        r = FB[i % DEPTH] + 16 + 4 * n
        a(f"s_add_u32 s36, s34, {i*8*4608 + (n//4)*4096}")
        if n == 4:
            a("s_mov_b64 exec, s[48:49]")
            a(f"buffer_load_dwordx4 v[{r}:{r+3}], v7, s[20:23], s36 offen")
            a("s_mov_b64 exec, -1")
        else:
            a(f"buffer_load_dwordx4 v[{r}:{r+3}], v8, s[20:23], s36 offen offset:{(n%4)*1024}")
        vm.issue(("w", i, n))
    for fb in FB:
        for k in range(4):
            a(f"v_mov_b32 v{fb+32+k}, 0")
    for i in range(DEPTH):
        for q in range(4): ldx(i, q)
        for n in range(5): ldw(i, n)
    for r in range(ACC, ACC + 80):
        a(f"v_mov_b32 v{r}, 0")
    for i in range(NCH):
        b = FB[i % DEPTH]
        if i in (0, 1, 6, 12): st.stamp()
        for n in range(5):
            for q in range(4):
                vm.need(("x", i, q), ("w", i, n))
                c = ACC + (q * 5 + n) * 4
                a(f"v_mfma_f32_16x16x32_bf16 v[{c}:{c+3}], v[{b+16+4*n}:{b+16+4*n+3}], v[{b+4*q}:{b+4*q+3}], v[{c}:{c+3}]")
                if n == 4 and i + DEPTH < NCH:
                    ldx(i + DEPTH, q)
            if i + DEPTH < NCH:
                ldw(i + DEPTH, n)
```

```python
from gen_common import *
import math

KG_LDS = 22784

def kgen_body(a, name, sblk, prof=False, fused=False):
    st = Stamps(a, prof, kid=3, vr=160 if fused else 102)
    st.stamp()
    a("s_load_dwordx8 s[8:15], s[0:1], 8")
    a("s_load_dwordx4 s[16:19], s[0:1], 40")
    a("s_load_dwordx2 s[20:21], s[0:1], 56")
    a(f"s_load_dwordx2 s[22:23], s[0:1], {ARG['ws']}")
    a(f"s_mov_b32 s30, {f32hex(math.log2(math.e))}")
    a(f"s_mov_b32 s31, {f32hex(1.0/(2*math.pi))}")
    a(f"s_mov_b32 s32, {f32hex(2048.0)}")
    a(f"""
    v_lshrrev_b32 v1, 6, v0             ; wave
    v_and_b32 v2, 63, v0                ; lane
    v_and_b32 v3, 15, v0                ; l&15
    v_bfe_u32 v4, v0, 4, 2              ; g = (l>>4)&3
    s_lshl_b32 s3, s{sblk}, 8           ; d*256 bytes
    v_lshl_add_u32 v5, v0, 1, s3
    s_lshl_b32 s4, s{sblk}, 1
    v_mov_b32 v6, s4
    v_mov_b32 v28, 0                    ; l=2048 term
    v_mov_b32 v29, 0                    ; max |W|
    v_cmp_gt_u32 vcc, 128, v0
    s_and_saveexec_b64 s[24:25], vcc
    s_cbranch_execz {name}_p0a
    s_waitcnt lgkmcnt(0)
    global_load_ushort v10, v5, s[8:9]
    global_load_ushort v11, v5, s[10:11]
    global_load_ushort v12, v5, s[12:13]
    global_load_ushort v13, v5, s[14:15]
    global_load_ushort v14, v5, s[16:17]
    global_load_ushort v15, v5, s[18:19]
    global_load_ushort v16, v6, s[20:21]
    """)
    a.label(f"{name}_p0a")
    a("s_mov_b64 exec, -1")
    a("v_lshlrev_b32 v7, 3, v0")
    a("v_sub_u32 v7, 2047, v7        ; l for e=0")
    a("s_mov_b32 s33, 0xffffff80")
    for e in range(8):
        a(f"""
        v_subrev_u32 v17, {e}, v7
        v_cvt_f32_u32 v18, v17
        v_cvt_pk_bf16_f32 v18, v18, v18
        v_and_b32 v18, 0xffff, v18
        v_and_b32 v19, s33, v18
        v_add_u32 v18, v18, v19
        v_subrev_u32 v18, 34176, v18
        v_cmp_gt_u32 vcc, 256, v17
        s_nop 1
        v_cndmask_b32 v18, v18, v17, vcc
        v_lshlrev_b32 v{72+e}, 2, v18
        """)
    a(f"""
    v_cmp_gt_u32 vcc, 128, v0
    s_and_saveexec_b64 s[24:25], vcc
    s_cbranch_execz {name}_p0skip
    s_waitcnt vmcnt(0)
    v_lshlrev_b32 v10, 16, v10
    v_lshlrev_b32 v11, 16, v11
    v_lshlrev_b32 v12, 16, v12
    v_lshlrev_b32 v13, 16, v13
    v_lshlrev_b32 v14, 16, v14
    v_lshlrev_b32 v15, 16, v15
    v_lshlrev_b32 v16, 16, v16
    v_mul_f32 v16, s30, v16
    v_exp_f32 v16, v16
    s_nop 0
    v_cvt_pk_bf16_f32 v16, v16, v16
    v_lshlrev_b32 v16, 16, v16
    v_mul_f32 v10, v16, v10             ; a
    v_mul_f32 v11, v16, v11             ; b
    v_mul_f32 v12, v16, v12             ; dBr
    v_mul_f32 v13, v16, v13             ; dBi
    v_mul_f32 v20, s30, v10             ; a'
    v_mul_f32 v21, s31, v11             ; b'
    v_mul_f32 v17, v15, v13             ; Ci*dBi
    v_fma_f32 v22, v14, v12, -v17       ; Wr
    v_mul_f32 v17, v15, v12             ; Ci*dBr
    v_fma_f32 v23, v14, v13, v17        ; Wi
    v_lshlrev_b32 v7, 4, v0
    ds_write_b128 v7, v[20:23]
    v_max_f32 v29, abs(v22), abs(v23)
    ; l = 2048 term
    v_mul_f32 v24, s32, v20
    v_exp_f32 v24, v24
    v_mul_f32 v25, s32, v21
    v_fract_f32 v25, v25
    v_cos_f32 v26, v25
    v_sin_f32 v27, v25
    s_nop 0
    v_mul_f32 v27, v23, v27
    v_fma_f32 v26, v22, v26, -v27
    v_mul_f32 v28, v24, v26
    """)
    a.label(f"{name}_p0skip")
    a(f"""
    s_mov_b64 exec, -1
    s_nop 1
    v_add_f32_dpp v24, v28, v28 quad_perm:[1,0,3,2] row_mask:0xf bank_mask:0xf
    v_max_f32_dpp v25, v29, v29 quad_perm:[1,0,3,2] row_mask:0xf bank_mask:0xf
    s_nop 0
    v_add_f32_dpp v28, v24, v24 quad_perm:[2,3,0,1] row_mask:0xf bank_mask:0xf
    v_max_f32_dpp v29, v25, v25 quad_perm:[2,3,0,1] row_mask:0xf bank_mask:0xf
    s_nop 0
    v_add_f32_dpp v24, v28, v28 row_half_mirror row_mask:0xf bank_mask:0xf
    v_max_f32_dpp v25, v29, v29 row_half_mirror row_mask:0xf bank_mask:0xf
    s_nop 0
    v_add_f32_dpp v28, v24, v24 row_mirror row_mask:0xf bank_mask:0xf
    v_max_f32_dpp v29, v25, v25 row_mirror row_mask:0xf bank_mask:0xf
    v_lshrrev_b32 v14, 4, v0
    v_lshlrev_b32 v14, 2, v14
    ds_write_b32 v14, v29 offset:{22528}
    v_readlane_b32 s26, v28, 0
    v_readlane_b32 s27, v28, 16
    v_readlane_b32 s28, v28, 32
    v_readlane_b32 s29, v28, 48
    s_nop 3
    v_mov_b32 v28, s26
    v_add_f32 v28, s27, v28
    v_add_f32 v28, s28, v28
    v_add_f32 v28, s29, v28
    v_mul_u32_u24 v8, 5120, v1
    v_add_u32 v8, 2048, v8
    v_lshlrev_b32 v9, 9, v1
    v_lshl_add_u32 v9, v4, 6, v9
    v_cvt_f32_u32 v31, v3               ; lj
    v_mul_f32 v30, 0x41800000, v31      ; li
    v_and_b32 v14, 7, v3
    v_lshlrev_b32 v14, 2, v14
    """)
    for r in range(16):
        a(f"v_mov_b32 v{112+r}, 0")
    st.stamp()
    a("s_waitcnt lgkmcnt(0)")
    a("s_barrier")
    st.stamp()
    a(f"ds_read_b32 v29, v14 offset:{22528}")
    for G in range(8):
        S, j = G // 4, G % 4
        a(f"ds_read_b128 v[{80+4*G}:{83+4*G}], v9 offset:{(16*S + j)*16}")
    a(f"""
    s_waitcnt lgkmcnt(8)
    s_nop 1
    v_max_f32_dpp v25, v29, v29 quad_perm:[1,0,3,2] row_mask:0xf bank_mask:0xf
    s_nop 1
    v_max_f32_dpp v29, v25, v25 quad_perm:[2,3,0,1] row_mask:0xf bank_mask:0xf
    s_nop 1
    v_max_f32_dpp v25, v29, v29 row_half_mirror row_mask:0xf bank_mask:0xf
    v_lshrrev_b32 v25, 23, v25
    v_sub_u32 v25, 264, v25
    v_min_u32 v25, 253, v25
    v_max_u32 v15, 1, v25               ; v15 = f1
    v_lshlrev_b32 v29, 23, v15          ; sW
    v_mul_f32 v28, v29, v28
    ds_write_b32 v8, v28 offset:{1152*4}
    s_waitcnt lgkmcnt(1)
    """)
    QH, PH, PL = 40, 56, 16
    PL = 128
    for G in range(8):
        S, j = G // 4, G % 4
        pa, pb, wr, wi = 80 + 4 * G, 81 + 4 * G, 82 + 4 * G, 83 + 4 * G
        a(f"""
        v_pk_mul_f32 v[24:25], v[{pa}:{pa+1}], v[30:31] op_sel_hi:[0,1]
        v_pk_mul_f32 v[26:27], v[{pa}:{pa+1}], v[30:31] op_sel:[1,0] op_sel_hi:[1,1]
        v_pk_mul_f32 v[{wr}:{wi}], v[{wr}:{wi}], v[28:29] op_sel:[0,1] op_sel_hi:[1,1]
        v_exp_f32 v24, v24
        v_exp_f32 v25, v25
        v_fract_f32 v26, v26
        v_fract_f32 v27, v27
        v_cos_f32 v32, v26
        v_cos_f32 v33, v27
        v_sin_f32 v34, v26
        v_sin_f32 v35, v27
        s_nop 0
        v_pk_mul_f32 v[32:33], v[24:25], v[32:33]
        v_pk_mul_f32 v[34:35], v[24:25], v[34:35]
        """)
        for r in range(4):
            if r > 0:
                a(f"""
                v_pk_mul_f32 v[24:25], v[34:35], v[34:35]
                v_pk_add_f32 v[26:27], v[32:33], v[32:33]
                v_pk_fma_f32 v[32:33], v[32:33], v[32:33], v[24:25] neg_lo:[0,0,1] neg_hi:[0,0,1]
                v_pk_mul_f32 v[34:35], v[26:27], v[34:35]
                """)
            a(f"""
            v_mul_f32 v24, v{wi}, v34
            v_mul_f32 v25, v{wi}, v32
            v_cvt_pk_f16_f32 v{QH+4*r+j}, v33, v35
            v_fma_f32 v36, v{wr}, v32, -v24
            v_fma_f32 v37, -v{wr}, v34, -v25
            v_cvt_pk_f16_f32 v{PH+4*r+j}, v36, v37
            v_fma_mix_f32 v36, v{PH+4*r+j}, -1.0, v36 op_sel_hi:[1,0,0]
            v_fma_mix_f32 v37, v{PH+4*r+j}, -1.0, v37 op_sel:[1,0,0] op_sel_hi:[1,0,0]
            v_cvt_pk_f16_f32 v{PL+4*r+j}, v36, v37
            """)
        if j == 3:
            a("s_nop 1")
            for r in range(4):
                a(f"v_mfma_f32_16x16x32_f16 v[{112+4*r}:{115+4*r}], v[{QH+4*r}:{QH+4*r+3}], v[{PH+4*r}:{PH+4*r+3}], v[{112+4*r}:{115+4*r}]")
            for r in range(4):
                a(f"v_mfma_f32_16x16x32_f16 v[{112+4*r}:{115+4*r}], v[{QH+4*r}:{QH+4*r+3}], v[{PL+4*r}:{PL+4*r+3}], v[{112+4*r}:{115+4*r}]")
    st.stamp()
    a("""
    v_lshlrev_b32 v10, 6, v3
    v_lshl_add_u32 v10, v4, 4, v10
    v_add_u32 v10, v10, v8
    s_nop 7
    """)
    for r in range(4):
        a(f"ds_write_b128 v10, v[{112+4*r}:{115+4*r}] offset:{1024*r}")
    a("s_waitcnt lgkmcnt(0)")
    a("s_barrier")
    st.stamp()
    for e in range(8):
        a(f"""
        ds_read_b32 v{32+4*e}, v{72+e} offset:{2048}
        ds_read_b32 v{33+4*e}, v{72+e} offset:{2048+5120}
        ds_read_b32 v{34+4*e}, v{72+e} offset:{2048+10240}
        ds_read_b32 v{35+4*e}, v{72+e} offset:{2048+15360}
        """)
    a("s_waitcnt lgkmcnt(0)")
    for e in range(8):
        a(f"v_add_f32 v{32+4*e}, v{32+4*e}, v{33+4*e}")
        a(f"v_add_f32 v{34+4*e}, v{34+4*e}, v{35+4*e}")
        a(f"v_add_f32 v{20+e}, v{32+4*e}, v{34+4*e}")
    a("v_max_f32 v12, abs(v20), abs(v21)")
    for e in range(2, 8, 2):
        a(f"v_max3_f32 v12, abs(v{20+e}), abs(v{21+e}), v12")
    a(f"""
    s_nop 1
    v_max_f32_dpp v13, v12, v12 quad_perm:[1,0,3,2] row_mask:0xf bank_mask:0xf
    s_nop 1
    v_max_f32_dpp v12, v13, v13 quad_perm:[2,3,0,1] row_mask:0xf bank_mask:0xf
    s_nop 1
    v_max_f32_dpp v13, v12, v12 row_half_mirror row_mask:0xf bank_mask:0xf
    s_nop 1
    v_max_f32_dpp v12, v13, v13 row_mirror row_mask:0xf bank_mask:0xf
    v_lshrrev_b32 v14, 4, v0
    v_lshlrev_b32 v14, 2, v14
    ds_write_b32 v14, v12 offset:{22528+64}
    s_waitcnt lgkmcnt(0)
    s_barrier
    v_lshlrev_b32 v14, 2, v3
    ds_read_b32 v12, v14 offset:{22528+64}
    s_waitcnt lgkmcnt(0)
    s_nop 1
    v_max_f32_dpp v13, v12, v12 quad_perm:[1,0,3,2] row_mask:0xf bank_mask:0xf
    s_nop 1
    v_max_f32_dpp v12, v13, v13 quad_perm:[2,3,0,1] row_mask:0xf bank_mask:0xf
    s_nop 1
    v_max_f32_dpp v13, v12, v12 row_half_mirror row_mask:0xf bank_mask:0xf
    s_nop 1
    v_max_f32_dpp v12, v13, v13 row_mirror row_mask:0xf bank_mask:0xf
    v_lshrrev_b32 v13, 23, v12
    v_sub_u32 v13, 267, v13
    v_min_u32 v13, 253, v13
    v_max_u32 v13, 1, v13
    v_add_u32 v14, v13, v15
    v_sub_u32 v14, 381, v14
    v_max_i32 v14, 1, v14
    v_min_i32 v14, 254, v14
    v_lshlrev_b32 v13, 23, v13          ; scale
    v_lshlrev_b32 v14, 23, v14
    """)
    for e in range(8):
        a(f"v_mul_f32 v{20+e}, v13, v{20+e}")
    for e in range(4):
        a(f"v_cvt_pk_f16_f32 v{32+e}, v{20+2*e}, v{21+2*e}")
    st.stamp()
    if fused:
        return st
    if prof:
        a("v_lshrrev_b32 v100, 6, v0")
        a("s_nop 0")
        a("v_readfirstlane_b32 s5, v100")
        st.dump(22, 5, 4)
    srd(a, 36, 22, 576 * KROW, WS_KEXP)
    srd(a, 40, 22, 576 * 4, WS_KSCALE)
    a(f"""
    s_mul_i32 s3, s{sblk}, {KROW}
    v_lshl_add_u32 v15, v0, 4, s3
    buffer_store_dwordx4 v[32:35], v15, s[36:39], 0 offen
    v_mov_b32 v36, 0
    v_mov_b32 v37, 0
    v_mov_b32 v38, 0
    v_mov_b32 v39, 0
    v_add_u32 v15, 4096, v15
    s_lshl_b32 s3, s{sblk}, 2
    v_mov_b32 v16, s3
    v_cmp_gt_u32 vcc, 16, v0
    s_and_saveexec_b64 s[24:25], vcc
    s_cbranch_execz {name}_end
    buffer_store_dwordx4 v[36:39], v15, s[36:39], 0 offen
    v_cmp_eq_u32 vcc, 0, v0
    s_and_saveexec_b64 s[24:25], vcc
    buffer_store_dword v14, v16, s[40:43], 0 offen
    """)
```

```python
from gen_common import *

def ln1_body(a, wt=False):
    if wt: a("s_setprio 3")
    a(f"s_load_dwordx2 s[4:5], s[0:1], {ARG['x']}")
    a(f"s_load_dwordx2 s[6:7], s[0:1], {ARG['ws']}")
    a("""
    v_lshrrev_b32 v1, 4, v0
    v_and_b32 v2, 15, v0
    s_lshl_b32 s3, s2, 4
    s_lshl_b32 s26, s46, 2
    s_add_u32 s3, s3, s26
    v_add_u32 v1, s3, v1                ; row
    v_mul_u32_u24 v3, 1152, v1
    v_lshl_add_u32 v3, v2, 3, v3
    s_waitcnt lgkmcnt(0)
    """)
    srd(a, 8, 4, 2048 * 1152)
    for i in range(9):
        a(f"buffer_load_dwordx2 v[{8+2*i}:{9+2*i}], v3, s[8:11], 0 offen offset:{128*i}")
    srd(a, 12, 6, 2048 * 8, WS_STATS1)
    srd(a, 28, 6, 576 * TS, WS_UT)
    a(f"s_mov_b32 s20, {f32hex(1.0/576)}")
    a(f"s_mov_b32 s21, {f32hex(576.0)}")
    a(f"s_mov_b32 s22, 0xffff0000")
    a(f"s_mov_b32 s23, {f32hex(1e-5)}")
    ND = 18
    a(f"""
    v_lshrrev_b32 v126, 4, v0
    v_add_u32 v126, s26, v126
    v_mul_u32_u24 v126, 1184, v126
    v_lshl_add_u32 v126, v2, 3, v126
    v_lshrrev_b32 v4, 4, v0
    v_and_b32 v5, 1, v4
    v_bfe_u32 v6, v0, 2, 2
    v_lshl_add_u32 v5, v5, 3, v6        ; row
    v_mul_u32_u24 v127, 1184, v5
    v_lshrrev_b32 v5, 1, v4
    v_lshl_add_u32 v127, v5, 5, v127
    v_and_b32 v6, 3, v0
    v_lshl_add_u32 v127, v6, 3, v127
    s_mul_i32 s27, s46, 288
    v_add_u32 v127, s27, v127
    v_lshl_add_u32 v6, v5, 4, v2
    s_mul_i32 s27, s46, 144
    v_add_u32 v6, s27, v6
    v_mul_u32_u24 v128, {TS}, v6
    v_and_b32 v5, 1, v4
    v_lshl_add_u32 v128, v5, 4, v128
    s_lshl_b32 s27, s2, 5
    v_add_u32 v128, s27, v128
    """)
    for d in range(ND):
        if d % 2 == 0:
            a(f"s_waitcnt vmcnt({8 - d//2})")
        a(f"v_lshlrev_b32 v{44+2*d}, 16, v{8+d}")
        a(f"v_and_b32 v{45+2*d}, s22, v{8+d}")
        if d == 1:
            a("v_pk_add_f32 v[116:117], v[44:45], v[46:47]")
        elif d == 3:
            a("v_pk_add_f32 v[118:119], v[48:49], v[50:51]")
        elif d > 3:
            r = 116 + 2 * (d & 1)
            a(f"v_pk_add_f32 v[{r}:{r+1}], v[{r}:{r+1}], v[{44+2*d}:{45+2*d}]")
    def reduce16(dst):
        a(f"""
        v_pk_add_f32 v[116:117], v[116:117], v[118:119]
        s_nop 0
        v_add_f32 v4, v116, v117
        s_nop 1
        v_add_f32_dpp v5, v4, v4 quad_perm:[1,0,3,2] row_mask:0xf bank_mask:0xf
        s_nop 1
        v_add_f32_dpp v4, v5, v5 quad_perm:[2,3,0,1] row_mask:0xf bank_mask:0xf
        s_nop 1
        v_add_f32_dpp v6, v4, v4 row_half_mirror row_mask:0xf bank_mask:0xf
        s_nop 1
        v_add_f32_dpp v5, v6, v6 row_mirror row_mask:0xf bank_mask:0xf
        v_mul_f32 v4, s20, v5
        v_fma_f32 v6, -v4, s21, v5
        v_fma_f32 {dst}, v6, s20, v4
        """)
    reduce16("v120")
    for d in range(ND):
        t = 122 + 2 * (d & 1)
        r = 116 + 2 * (d & 1)
        a(f"v_pk_add_f32 v[{t}:{t+1}], v[{44+2*d}:{45+2*d}], v[120:121] op_sel_hi:[1,0] neg_lo:[0,1] neg_hi:[0,1]")
        if d < 2:
            a(f"v_pk_mul_f32 v[{r}:{r+1}], v[{t}:{t+1}], v[{t}:{t+1}]")
        else:
            a(f"v_pk_fma_f32 v[{r}:{r+1}], v[{t}:{t+1}], v[{t}:{t+1}], v[{r}:{r+1}]")
    reduce16("v121")
    a("""
    v_cvt_pk_bf16_f32 v4, v120, v121
    v_lshlrev_b32 v120, 16, v4          ; m_b
    v_and_b32 v121, s22, v4             ; v_b
    v_add_f32 v121, s23, v121
    v_cvt_pk_bf16_f32 v4, v121, v121
    v_lshlrev_b32 v121, 16, v4
    v_sqrt_f32 v121, v121
    s_nop 0
    v_cvt_pk_bf16_f32 v4, v121, v121
    v_lshlrev_b32 v121, 16, v4          ; s
    v_rcp_f32 v122, v121
    v_lshlrev_b32 v3, 3, v1
    v_cmp_eq_u32 vcc, 0, v2
    s_and_saveexec_b64 s[24:25], vcc
    buffer_store_dwordx2 v[120:121], v3, s[12:15], 0 offen
    s_mov_b64 exec, -1
    """)
    for d in range(ND):
        x = 44 + 2 * d
        T = 4 if d & 1 else 116
        a(f"""
        v_pk_add_f32 v[{x}:{x+1}], v[{x}:{x+1}], v[120:121] op_sel_hi:[1,0] neg_lo:[0,1] neg_hi:[0,1]
        v_cvt_pk_bf16_f32 v{T}, v{x}, v{x+1}
        v_lshlrev_b32 v{x}, 16, v{T}
        v_and_b32 v{x+1}, s22, v{T}
        v_pk_mul_f32 v[{T}:{T+1}], v[{x}:{x+1}], v[122:123] op_sel_hi:[1,0]
        v_pk_fma_f32 v[{T+2}:{T+3}], v[{T}:{T+1}], v[120:121], v[{x}:{x+1}] op_sel:[0,1,0] op_sel_hi:[1,1,1] neg_lo:[1,0,0] neg_hi:[1,0,0]
        v_pk_fma_f32 v[{T}:{T+1}], v[{T+2}:{T+3}], v[122:123], v[{T}:{T+1}] op_sel_hi:[1,0,1]
        v_cvt_pk_bf16_f32 v{T}, v{T}, v{T+1}
        v_lshlrev_b32 v{T+1}, 16, v{T}
        v_and_b32 v{T}, s22, v{T}
        v_cvt_pk_f16_f32 v{8+d}, v{T+1}, v{T}
        """)
        if d % 2 == 1:
            i = d // 2
            a(f"ds_write_b64 v126, v[{8+2*i}:{9+2*i}] offset:{128*i}")
    a("s_waitcnt lgkmcnt(0)")
    a("s_barrier")
    for m in range(5):
        a(f"ds_read_b64_tr_b16 v[{44+4*m}:{45+4*m}], v127 offset:{64*m}")
        a(f"ds_read_b64_tr_b16 v[{46+4*m}:{47+4*m}], v127 offset:{64*m + 4*1184}")
    for m in range(5):
        a(f"s_waitcnt lgkmcnt({2*(4-m)})")
        a(f"s_mov_b32 s27, {32*TS*m}")
        if m == 4:
            a("s_mov_b64 exec, 0xffffffff")
        a(f"buffer_store_dwordx4 v[{44+4*m}:{47+4*m}], v128, s[28:31], s27 offen" + (" sc1" if wt else ""))
    a("s_mov_b64 exec, -1")
```

```python
from gen_common import *
from gen_gemm2 import w2pack_body

NW = 6
NM = 3
LN2_LDS = NW * 1536 + 1024
LN2_GRID = 256
LN2_BLOCK = NW * 64

def ln2_kernel(a, name, prof=False):
    st = Stamps(a, prof, kid=4, vr=94)
    kernel_header(a, name)
    a(f"s_cmp_ge_u32 s2, {LN2_GRID}")
    a(f"s_cbranch_scc1 {name}_end")
    a("s_cmp_ge_u32 s2, 256")
    a(f"s_cbranch_scc0 {name}_main")
    a("v_lshrrev_b32 v1, 8, v0")
    a("s_nop 0")
    a("v_readfirstlane_b32 s3, v1")
    a("s_cmp_lg_u32 s3, 0")
    a(f"s_cbranch_scc1 {name}_end")
    a("s_sub_u32 s2, s2, 256")
    w2pack_body(a, name + "_wp0", 2)
    a(f"s_branch {name}_end")
    a.label(f"{name}_main")
    st.stamp()
    a("""
    s_and_b32 s3, s2, 7
    s_lshr_b32 s2, s2, 3
    s_lshl_b32 s3, s3, 5
    s_add_u32 s2, s2, s3
    """)
    a(f"s_load_dwordx2 s[4:5], s[0:1], {ARG['x']}")
    a(f"s_load_dwordx2 s[6:7], s[0:1], {ARG['ws']}")
    a(f"s_load_dwordx2 s[40:41], s[0:1], {ARG['Dskip']}")
    a("""
    v_lshrrev_b32 v1, 6, v0
    v_and_b32 v2, 63, v0                ; lane
    s_nop 0
    v_readfirstlane_b32 s3, v1          ; wave
    v_and_b32 v3, 7, v2                 ; t
    v_lshrrev_b32 v4, 3, v2             ; cg
    s_waitcnt lgkmcnt(0)
    """)
    st.stamp()
    srd(a, 8, 4, 2048 * 1152)
    srd(a, 12, 6, 2048 * 8, WS_STATS1)
    srd(a, 16, 6, 576 * TS, WS_YT)
    srd(a, 20, 6, 2048 * 1152, WS_H)
    srd(a, 24, 6, 2048 * 1152, WS_HN)
    srd(a, 28, 40, 1152)
    X, Y, D = 16, 24, 32
    a(f"""
    s_mul_i32 s32, s3, 1536
    s_mul_i32 s33, s3, {96*TS}
    s_lshl_b32 s34, s2, 4               ; t0*2
    s_add_u32 s33, s33, s34
    v_and_b32 v5, 0x38, v2              ; 8G
    v_and_b32 v6, 1, v2
    v_lshl_add_u32 v5, v6, 2, v5
    v_bfe_u32 v6, v2, 1, 2
    v_add_u32 v5, v5, v6
    v_mul_u32_u24 v5, {TS}, v5
    """)
    for i in range(2):
        if i == 1:
            a("s_mov_b64 exec, 0xffffffff")
        a(f"s_add_u32 m0, s32, {1024*i}")
        a(f"s_add_u32 s35, s33, {64*TS*i}")
        a(f"buffer_load_dwordx4 v5, s[16:19], s35 offen lds")
    a("s_mov_b64 exec, -1")
    a(f"""
    s_lshl_b32 s34, s2, 3
    v_add_u32 v6, s34, v3               ; row
    v_mul_u32_u24 v7, 1152, v6
    s_mul_i32 s35, s3, 192
    v_lshl_add_u32 v8, v4, 3, s35       ; (96w + 4cg)*2
    v_add_u32 v7, v7, v8
    v_lshlrev_b32 v9, 3, v6
    buffer_load_dwordx2 v[10:11], v9, s[12:15], 0 offen
    """)
    for m in range(NM):
        a(f"buffer_load_dwordx2 v[{X+2*m}:{X+2*m+1}], v7, s[8:11], 0 offen offset:{64*m}")
    for m in range(NM):
        a(f"buffer_load_dwordx2 v[{D+2*m}:{D+2*m+1}], v8, s[28:31], 0 offen offset:{64*m}")
    a(f"""
    v_lshlrev_b32 v12, 3, v2
    v_add_u32 v12, s32, v12
    s_mov_b32 s36, 0xffff0000
    s_mov_b32 s37, {f32hex(1.0/576)}
    s_mov_b32 s38, {f32hex(576.0)}
    s_mov_b32 s39, {f32hex(1e-5)}
    v_lshlrev_b32 v15, 5, v3            ; t*32
    v_lshl_add_u32 v14, v1, 2, v15      ; t*32 + w*4
    s_waitcnt vmcnt({1+2*NM})
    """)
    st.stamp()
    for m in range(NM):
        a(f"ds_read_b64_tr_b16 v[{Y+2*m}:{Y+2*m+1}], v12 offset:{512*m}")
    a(f"s_waitcnt vmcnt({2*NM})")
    a("v_rcp_f32 v13, v11")
    H = 48
    a("s_waitcnt vmcnt(0) lgkmcnt(0)")
    st.stamp()
    for dw in range(2 * NM):
        x, y, d = X + dw, Y + dw, D + dw
        h0, h1 = H + 2 * dw, H + 2 * dw + 1
        a(f"""
        v_lshlrev_b32 v{h0}, 16, v{x}
        v_and_b32 v{h1}, s36, v{x}
        v_sub_f32 v84, v{h0}, v10
        v_sub_f32 v85, v{h1}, v10
        v_cvt_pk_bf16_f32 v86, v84, v85
        v_lshlrev_b32 v84, 16, v86
        v_and_b32 v85, s36, v86
        v_mul_f32 v86, v84, v13
        v_mul_f32 v87, v85, v13
        v_fma_f32 v88, -v86, v11, v84
        v_fma_f32 v89, -v87, v11, v85
        v_fma_f32 v86, v88, v13, v86
        v_fma_f32 v87, v89, v13, v87
        v_cvt_pk_bf16_f32 v86, v86, v87     ; u (bf16 x2)
        v_lshlrev_b32 v84, 16, v86
        v_and_b32 v85, s36, v86
        v_lshlrev_b32 v86, 16, v{d}
        v_and_b32 v87, s36, v{d}
        v_mul_f32 v84, v84, v86
        v_mul_f32 v85, v85, v87
        v_cvt_pk_bf16_f32 v86, v84, v85     ; u*D
        v_lshlrev_b32 v84, 16, v86
        v_and_b32 v85, s36, v86
        v_lshlrev_b32 v86, 16, v{y}
        v_and_b32 v87, s36, v{y}
        v_add_f32 v84, v84, v86
        v_add_f32 v85, v85, v87
        v_cvt_pk_bf16_f32 v86, v84, v85     ; y + u*D
        v_lshlrev_b32 v84, 16, v86
        v_and_b32 v85, s36, v86
        v_add_f32 v84, v84, v{h0}
        v_add_f32 v85, v85, v{h1}
        v_cvt_pk_bf16_f32 v{x}, v84, v85
        v_lshlrev_b32 v{h0}, 16, v{x}
        v_and_b32 v{h1}, s36, v{x}
        """)
        if dw % 2 == 1:
            m = dw // 2
            a(f"buffer_store_dwordx2 v[{X+2*m}:{X+2*m+1}], v7, s[20:23], 0 offen offset:{64*m}")
    st.stamp()
    RED = NW * 1536
    def reduce(dst, slot):
        a(f"""
        s_nop 1
        v_add_f32_dpp v85, v84, v84 row_ror:8 row_mask:0xf bank_mask:0xf
        v_mov_b32 v84, v85
        s_nop 1
        v_permlane32_swap_b32 v84, v85
        s_nop 1
        v_add_f32 v84, v84, v85
        v_mov_b32 v85, v84
        s_nop 1
        v_permlane16_swap_b32 v84, v85
        s_nop 1
        v_add_f32 v84, v84, v85
        ds_write_b32 v14, v84 offset:{RED + 256*slot}
        s_waitcnt lgkmcnt(0)
        s_barrier
        ds_read_b128 v[84:87], v15 offset:{RED + 256*slot}
        ds_read_b64 v[88:89], v15 offset:{RED + 256*slot + 16}
        s_waitcnt lgkmcnt(0)
        v_add_f32 v84, v84, v85
        v_add_f32 v86, v86, v87
        v_add_f32 v88, v88, v89
        v_add_f32 v85, v84, v86
        v_add_f32 v85, v85, v88
        v_mul_f32 v84, s37, v85
        v_fma_f32 v86, -v84, s38, v85
        v_fma_f32 {dst}, v86, s37, v84
        """)
    NH = 4 * NM
    a(f"v_add_f32 v84, v{H}, v{H+1}")
    a(f"v_add_f32 v85, v{H+2}, v{H+3}")
    for k in range(4, NH, 2):
        a(f"v_add_f32 v84, v84, v{H+k}")
        a(f"v_add_f32 v85, v85, v{H+k+1}")
    a("v_add_f32 v84, v84, v85")
    reduce("v90", 0)
    a(f"v_sub_f32 v86, v{H}, v90")
    a(f"v_sub_f32 v87, v{H+1}, v90")
    a("v_mul_f32 v84, v86, v86")
    a("v_mul_f32 v85, v87, v87")
    for k in range(2, NH, 2):
        a(f"v_sub_f32 v86, v{H+k}, v90")
        a(f"v_sub_f32 v87, v{H+k+1}, v90")
        a("v_fma_f32 v84, v86, v86, v84")
        a("v_fma_f32 v85, v87, v87, v85")
    a("v_add_f32 v84, v84, v85")
    reduce("v91", 1)
    st.stamp()
    a(f"""
    v_cvt_pk_bf16_f32 v84, v90, v91
    v_lshlrev_b32 v90, 16, v84          ; m_b
    v_and_b32 v91, s36, v84
    v_add_f32 v91, s39, v91
    v_cvt_pk_bf16_f32 v84, v91, v91
    v_lshlrev_b32 v91, 16, v84
    v_sqrt_f32 v91, v91
    s_nop 0
    v_cvt_pk_bf16_f32 v84, v91, v91
    v_lshlrev_b32 v91, 16, v84          ; s
    v_rcp_f32 v92, v91
    v_and_b32 v85, 15, v6               ; r
    v_lshrrev_b32 v84, 2, v85
    v_sub_u32 v84, 4, v84
    v_and_b32 v84, 3, v84
    v_and_b32 v86, 3, v4
    v_xor_b32 v84, v84, v86
    v_lshlrev_b32 v84, 4, v84
    v_lshl_add_u32 v93, v85, 6, v84
    v_lshrrev_b32 v86, 2, v4
    v_lshl_add_u32 v93, v86, 3, v93
    s_lshr_b32 s42, s2, 1
    s_mul_i32 s42, s42, 18432
    s_mul_i32 s43, s3, 3072
    s_add_u32 s42, s42, s43
    """)
    for m in range(NM):
        for k in range(2):
            dw = 2 * m + k
            h0, h1 = H + 2 * dw, H + 2 * dw + 1
            a(f"""
            v_sub_f32 v{h0}, v{h0}, v90
            v_sub_f32 v{h1}, v{h1}, v90
            v_cvt_pk_bf16_f32 v84, v{h0}, v{h1}
            v_lshlrev_b32 v{h0}, 16, v84
            v_and_b32 v{h1}, s36, v84
            v_mul_f32 v84, v{h0}, v92
            v_mul_f32 v85, v{h1}, v92
            v_fma_f32 v86, -v84, v91, v{h0}
            v_fma_f32 v87, -v85, v91, v{h1}
            v_fma_f32 v84, v86, v92, v84
            v_fma_f32 v85, v87, v92, v85
            v_cvt_pk_bf16_f32 v{Y+dw}, v84, v85
            """)
        a(f"buffer_store_dwordx2 v[{Y+2*m}:{Y+2*m+1}], v93, s[24:27], s42 offen offset:{1024*m}")
    st.stamp()
    if prof: a("s_waitcnt vmcnt(0)")
    st.stamp()
    st.dump(6, 3, 6)
    a.label(f"{name}_end")
    a("s_endpgm")
    return kernel_desc(name, 96, sgpr=102)
```

```python
from gen_common import *
from gen_ln1 import ln1_body
from gen_kgen import kgen_body, KG_LDS

PRE_LDS = 53760
NLN = 128
PRE_GRID = 576 + NLN

def pre_kernel(a, name, prof=False):
    kernel_header(a, name)
    a(f"s_cmp_ge_u32 s2, {PRE_GRID}")
    a(f"s_cbranch_scc1 {name}_end")
    a(f"s_cmp_ge_u32 s2, {NLN}")
    a(f"s_cbranch_scc1 {name}_kg")
    a("""
    v_lshrrev_b32 v1, 6, v0
    s_nop 0
    v_readfirstlane_b32 s46, v1
    v_and_b32 v0, 63, v0
    s_and_b32 s4, s2, 7
    s_lshr_b32 s2, s2, 3
    s_lshl_b32 s4, s4, 4
    s_add_u32 s2, s2, s4
    """)
    ln1_body(a)
    a(f"s_branch {name}_end")
    a.label(f"{name}_kg")
    a(f"s_sub_u32 s2, s2, {NLN}")
    kgen_body(a, name, 2, prof)
    a.label(f"{name}_end")
    a("s_endpgm")
    return kernel_desc(name, 144, sgpr=102)
```

```python
from gen_common import *
import math
from gen_ln2 import ln2_embedded

G1_SLOT = 16384 + 2 * 9216
G1_LDS = 4 * G1_SLOT
NST = 18
import os
STMOD = os.environ.get('G1ST', '')
DRY = int(os.environ.get('G1DRY', '0'))
FUSE = int(os.environ.get('G1FUSE', '0'))

def gemm1_kernel(a, name, exact_round=False, prof=False):
    kernel_header(a, name)
    a("s_cmp_ge_u32 s2, 256")
    a(f"s_cbranch_scc1 {name}_end")
    a(f"s_load_dwordx4 s[4:7], s[0:1], {ARG['w1']}")
    a(f"s_load_dwordx2 s[8:9], s[0:1], {ARG['ws']}")
    a("""
    v_lshrrev_b32 v2, 6, v0
    v_and_b32 v1, 63, v0                ; lane
    s_nop 0
    v_readfirstlane_b32 s3, v2          ; wave
    s_and_b32 s10, s2, 7
    s_lshr_b32 s11, s2, 3
    s_and_b32 s12, s11, 3
    s_lshl_b32 s10, s10, 2
    s_add_u32 s10, s10, s12             ; cb
    s_lshr_b32 s11, s11, 2              ; rb
    s_and_b32 s13, s3, 3                ; wm
    s_waitcnt lgkmcnt(0)
    """)
    srd(a, 16, 8, 2048 * 1152, WS_HN)
    srd(a, 24, 8, 2048 * 9216, WS_HH)
    a("""
    s_cmp_ge_u32 s3, 6
    s_cselect_b32 s20, s6, s4
    s_cselect_b32 s21, s7, s5
    s_and_b32 s21, s21, 0xffff
    """)
    a(f"s_mov_b32 s22, {576*9216}")
    a("s_mov_b32 s23, 0x00020000")
    a(f"""
    v_and_b32 v3, 15, v1                ; l&15
    v_lshrrev_b32 v4, 4, v1             ; g
    v_bfe_u32 v5, v1, 2, 2
    v_sub_u32 v5, 4, v5
    v_and_b32 v5, 3, v5
    v_xor_b32 v5, v5, v4
    v_lshlrev_b32 v5, 4, v5
    v_lshl_add_u32 v2, v3, 6, v5
    s_lshl_b32 s14, s13, 12
    v_add_u32 v6, s14, v2               ; vXa0
    v_add_u32 v7, {2*G1_SLOT}, v6       ; vXa1
    v_lshrrev_b32 v4, 2, v1
    v_mul_u32_u24 v8, 288, v4
    v_and_b32 v5, 3, v1
    v_lshl_add_u32 v8, v5, 3, v8
    s_and_b32 s44, s10, 1
    s_xor_b32 s45, s44, 1
    s_lshl_b32 s45, s45, 8
    v_add_u32 v252, s45, v8             ; vW4a0
    v_add_u32 v253, {2*G1_SLOT}, v252   ; vW4a1
    s_lshl_b32 s45, s44, 5
    s_lshr_b32 s46, s3, 2
    s_lshl_b32 s46, s46, 7
    s_add_u32 s45, s45, s46
    v_add_u32 v8, s45, v8
    v_add_u32 v9, {2*G1_SLOT}, v8       ; vWa1
    """)
    a("s_cmp_ge_u32 s3, 4")
    a(f"s_cbranch_scc1 {name}_p1")
    gemm1_path(a, name, 0, exact_round, prof)
    a(f"s_branch {name}_end")
    a.label(f"{name}_p1")
    gemm1_path(a, name, 1, exact_round, prof)
    a.label(f"{name}_end")
    a("s_endpgm")
    return kernel_desc(name, 256, sgpr=102)

def gemm1_path(a, name, wn, exact_round, prof):
    st = Stamps(a, prof, kid=1)
    NT = 5 if wn == 0 else 4
    T0 = 0 if wn == 0 else 5
    VX = [16, 32]
    VW = 48
    ACC = 88
    nd = 4 if wn == 0 else 5
    lg = Cnt(a, "lgkmcnt"); vm = Cnt(a, "vmcnt")
    def acc(i, j, mat):
        return ACC + ((i * NT + j) * 2 + mat) * 4
    if prof and FUSE:
        a("s_memrealtime s[98:99]")
        a("s_memtime s[100:101]")
    else:
        st.stamp()
    if wn == 0:
        a(f"""
        v_lshlrev_b32 v10, 4, v1
        s_lshl_b32 s14, s11, 4
        s_lshl_b32 s15, s13, 2
        s_add_u32 s14, s14, s15
        s_mul_i32 s31, s14, {18*1024}
        s_lshl_b32 s30, s13, 12
        """)
    else:
        a(f"""
        s_and_b32 s14, s3, 1                ; hv
        s_mul_i32 s15, s14, {16*9216}
        s_mul_i32 s31, s10, 288
        s_add_u32 s15, s15, s31
        s_mov_b32 s32, {(1<<32)//18 + 1}
        s_lshr_b32 s33, s13, 1              ; matrix
        s_mul_i32 s30, s33, 9216
        s_mul_i32 s33, s14, 4608
        s_add_u32 s30, s30, s33
        s_add_u32 s30, s30, 16384
        """)
        for i in range(5):
            a(f"""
            v_add_u32 v4, {64*i}, v1
            v_mul_hi_u32 v5, v4, s32            ; row
            v_mul_u32_u24 v15, 18, v5
            v_sub_u32 v4, v4, v15               ; c
            v_mul_u32_u24 v5, 9216, v5
            v_lshl_add_u32 v{10+i}, v4, 4, v5
            v_add_u32 v{10+i}, s15, v{10+i}
            """)
    def dma_piece(s, i):
        slot = s & 3
        if wn == 0:
            a(f"s_add_u32 m0, s30, {slot*G1_SLOT + 1024*i}")
            a(f"s_add_u32 s34, s31, {(i*18 + s)*1024}")
            a(f"buffer_load_dwordx4 v10, s[16:19], s34 offen lds")
        else:
            a(f"s_add_u32 m0, s30, {slot*G1_SLOT + 1024*i}")
            a(f"s_mov_b32 s34, {s*32*9216}")
            if i == 4:
                a("s_mov_b64 exec, 0xffffffff")
            a(f"buffer_load_dwordx4 v{10+i}, s[20:23], s34 offen lds")
            if i == 4:
                a("s_mov_b64 exec, -1")
        vm.issue(("d", s))
    def xread(s, i):
        slot = s & 3
        base = "v6" if slot < 2 else "v7"
        off = (slot & 1) * G1_SLOT
        b = VX[s & 1]
        a(f"ds_read_b128 v[{b+4*i}:{b+4*i+3}], {base} offset:{off + 1024*i}")
        lg.issue(("x", s, i))
    def wread(s, j, mat, h):
        slot = s & 3
        base = "v8" if slot < 2 else "v9"
        if j == 4:
            base = "v252" if slot < 2 else "v253"
        off = (slot & 1) * G1_SLOT + 16384
        r = VW + (j * 2 + mat) * 4 + 2 * h
        o = off + mat * 9216 + (j & 3) * 32 + h * 16 * 288
        a(f"ds_read_b64_tr_b16 v[{r}:{r+1}], {base} offset:{o}")
        lg.issue(("w", s, j, mat, h))
    def fused_ln2():
        a(f"s_load_dwordx2 s[48:49], s[0:1], {ARG['dbg']}")
        a("s_lshl_b32 s54, s11, 5")
        a("s_add_u32 s54, s54, s10")
        if wn == 1:
            a("s_cmp_ge_u32 s3, 6")
            a(f"s_cbranch_scc1 {name}_lnskip")
        ln2_embedded(a, 3 * G1_SLOT)
        if wn == 1:
            a(f"s_branch {name}_lndone")
            a.label(f"{name}_lnskip")
            a("s_barrier")
            a("s_barrier")
            a.label(f"{name}_lndone")
        if prof: a("s_memtime s[60:61]")
        a("s_waitcnt vmcnt(0) lgkmcnt(0)")
        if prof: a("s_memtime s[62:63]")
        vm.done = vm.issued
        a("s_barrier")
        if wn == 1:
            for s_ in range(3):
                for i in range(nd):
                    dma_piece(s_, i)
        if prof: a("s_memtime s[64:65]")
        if wn == 0:
            a("s_cmp_lg_u32 s3, 0")
            a(f"s_cbranch_scc1 {name}_go")
            a(f"""
            s_lshl_b32 s50, s11, 5
            v_mov_b32 v100, s50
            v_mov_b32 v101, 1
            s_mov_b64 exec, 1
            global_atomic_add v100, v101, s[48:49] sc1
            s_mov_b32 s51, 0
            """)
            a.label(f"{name}_poll")
            a(f"""
            global_load_dword v102, v100, s[48:49] sc1
            s_waitcnt vmcnt(0)
            v_readfirstlane_b32 s50, v102
            s_add_u32 s51, s51, 1
            s_cmp_ge_u32 s51, 0x40000
            s_cbranch_scc1 {name}_go
            s_cmp_ge_u32 s50, 32
            s_cbranch_scc1 {name}_go
            s_sleep 1
            s_branch {name}_poll
            """)
            a.label(f"{name}_go")
            a("s_mov_b64 exec, -1")
        a("s_barrier")
        if prof:
            a("s_memtime s[66:67]")
            st.n = 4
    if FUSE:
        fused_ln2()
    if not (FUSE and wn == 1):
        for s in range(3):
            for i in range(nd):
                dma_piece(s, i)
    for r in range(ACC, ACC + 32 * NT):
        a(f"v_mov_b32 v{r}, 0")
    if DRY:
        a("s_mov_b32 s47, 1")
        a("s_mov_b64 exec, 0")
        a(f"s_branch {name}_epi{wn}")
        a.label(f"{name}_back{wn}")
        a("s_mov_b64 exec, -1")
        a("s_mov_b32 s47, 0")
    vm.need(("d", 0))
    a("s_barrier")
    st.stamp()
    for i in range(4):
        xread(0, i)
    for j in range(NT):
        for mat in range(2):
            for h in range(2):
                wread(0, j, mat, h)
    for s in range(NST):
        nxt = s + 1 < NST
        if nxt:
            vm.need(("d", s + 1))
            a("s_barrier")
        if s in (1, 5, 9, 13, 17):
            st.stamp()
        b = VX[s & 1]
        fill = []
        if nxt:
            fill += [("x", i) for i in range(4)]
        if s + 3 < NST:
            dm = [("d", i) for i in range(nd)]
            f2 = []
            while fill or dm:
                if fill: f2.append(fill.pop(0))
                if dm: f2.append(dm.pop(0))
            fill = f2
        pend = []
        groups = [(j, mat) for j in range(NT) for mat in range(2)]
        for gi, (j, mat) in enumerate(groups):
            w = VW + (j * 2 + mat) * 4
            for i in range(4):
                lg.need(("w", s, j, mat, 0), ("w", s, j, mat, 1), ("x", s, i))
                c = acc(i, j, mat)
                a(f"v_mfma_f32_16x16x32_bf16 v[{c}:{c+3}], v[{w}:{w+3}], v[{b+4*i}:{b+4*i+3}], v[{c}:{c+3}]")
                if pend:
                    wread(*pend.pop(0))
                elif fill:
                    k, idx = fill.pop(0)
                    if k == "x": xread(s + 1, idx)
                    else: dma_piece(s + 3, idx)
            if nxt:
                pend += [(s + 1, j, mat, 0), (s + 1, j, mat, 1)]
        while pend:
            wread(*pend.pop(0))
        while fill:
            k, idx = fill.pop(0)
            if k == "x": xread(s + 1, idx)
            else: dma_piece(s + 3, idx)
    st.stamp()
    a.label(f"{name}_epi{wn}")
    a(f"""
    s_lshl_b32 s14, s11, 4
    s_lshl_b32 s15, s13, 2
    s_add_u32 s14, s14, s15
    s_mul_i32 s35, s14, {144*1024}
    s_mul_i32 s36, s10, 9
    s_add_u32 s39, s36, s44
    s_add_u32 s39, s39, {4*wn}
    s_lshl_b32 s39, s39, 9
    s_add_u32 s39, s39, s35
    s_xor_b32 s40, s44, 1
    s_lshl_b32 s40, s40, 3
    s_add_u32 s40, s40, s36
    s_lshr_b32 s40, s40, 1
    s_lshl_b32 s40, s40, 10
    s_lshl_b32 s41, s44, 3
    s_add_u32 s40, s40, s41
    s_add_u32 s40, s40, s35
    s_mov_b32 s42, {f32hex(-math.log2(math.e))}
    s_mov_b32 s43, {f32hex(-math.log2(math.e))}
    s_nop 7
    """)
    def silu_multi(items):
        G = [(acc(i, j, 0), acc(i, j, 1), T, D) for (i, j, T, D) in items]
        for g, u, T, D in G:
            a(f"v_pk_mul_f32 v[{T}:{T+1}], v[{g}:{g+1}], s[42:43]")
            a(f"v_pk_mul_f32 v[{T+2}:{T+3}], v[{g+2}:{g+3}], s[42:43]")
        for g, u, T, D in G:
            for r in range(4): a(f"v_exp_f32 v{T+r}, v{T+r}")
        for g, u, T, D in G:
            a(f"v_pk_mul_f32 v[{g}:{g+1}], v[{g}:{g+1}], v[{u}:{u+1}]")
            a(f"v_pk_mul_f32 v[{g+2}:{g+3}], v[{g+2}:{g+3}], v[{u+2}:{u+3}]")
        for g, u, T, D in G:
            a(f"v_pk_add_f32 v[{T}:{T+1}], v[{T}:{T+1}], 1.0 op_sel_hi:[1,0]")
            a(f"v_pk_add_f32 v[{T+2}:{T+3}], v[{T+2}:{T+3}], 1.0 op_sel_hi:[1,0]")
        for g, u, T, D in G:
            for r in range(4): a(f"v_rcp_f32 v{T+r}, v{T+r}")
        a("s_nop 0")
        for g, u, T, D in G:
            a(f"v_pk_mul_f32 v[{T}:{T+1}], v[{g}:{g+1}], v[{T}:{T+1}]")
            a(f"v_pk_mul_f32 v[{T+2}:{T+3}], v[{g+2}:{g+3}], v[{T+2}:{T+3}]")
        for g, u, T, D in G:
            a(f"v_cvt_pk_bf16_f32 v{D}, v{T}, v{T+1}")
            a(f"v_cvt_pk_bf16_f32 v{D+1}, v{T+2}, v{T+3}")
    k = 0
    for p in range(2):
        for i in range(4):
            T = 16 + 16 * (k & 3); k += 1
            silu_multi([(i, 2 * p, T, T + 8), (i, 2 * p + 1, T + 4, T + 10)])
            a(f"s_add_u32 s41, s39, {i*144*1024 + p*1024}")
            a(f"buffer_store_dwordx4 v[{T+8}:{T+11}], v2, s[24:27], s41 offen")
    if wn == 0:
        for i2 in range(2):
            T = 16 + 16 * (k & 3); k += 1
            silu_multi([(2 * i2, 4, T, T + 8), (2 * i2 + 1, 4, T + 4, T + 10)])
            for q in range(2):
                a(f"s_add_u32 s41, s40, {(2*i2+q)*144*1024}")
                a(f"buffer_store_dwordx2 v[{T+8+2*q}:{T+9+2*q}], v2, s[24:27], s41 offen")
    if DRY:
        a("s_cmp_eq_u32 s47, 1")
        a(f"s_cbranch_scc1 {name}_back{wn}")
    st.stamp()
    if prof:
        a("s_waitcnt vmcnt(0)")
    st.stamp()
    if prof and FUSE:
        a("s_waitcnt lgkmcnt(0)")
        a(f"s_mov_b32 s{st.base + 2*st.n}, s100")
        st.n += 1
    st.dump(8, 3, 8)
```

```python
from gen_common import *
import re
from gen_gemm2 import w2pack_body

NW = 6
NM = 3
LN2_LDS = NW * 1536 + 1024
LN2_GRID = 256
LN2_BLOCK = NW * 64

def ln2_kernel(a, name, prof=False):
    st = Stamps(a, prof, kid=4, vr=94)
    kernel_header(a, name)
    a(f"s_cmp_ge_u32 s2, {LN2_GRID}")
    a(f"s_cbranch_scc1 {name}_end")
    a("s_cmp_ge_u32 s2, 256")
    a(f"s_cbranch_scc0 {name}_main")
    a("v_lshrrev_b32 v1, 8, v0")
    a("s_nop 0")
    a("v_readfirstlane_b32 s3, v1")
    a("s_cmp_lg_u32 s3, 0")
    a(f"s_cbranch_scc1 {name}_end")
    a("s_sub_u32 s2, s2, 256")
    w2pack_body(a, name + "_wp0", 2)
    a(f"s_branch {name}_end")
    a.label(f"{name}_main")
    st.stamp()
    a("""
    s_and_b32 s3, s2, 7
    s_lshr_b32 s2, s2, 3
    s_lshl_b32 s3, s3, 5
    s_add_u32 s2, s2, s3
    """)
    ln2_body(a, st)
    st.stamp()
    if prof: a("s_waitcnt vmcnt(0)")
    st.stamp()
    st.dump(6, 3, 6)
    a.label(f"{name}_end")
    a("s_endpgm")
    return kernel_desc(name, 96, sgpr=102)


def ln2_body(a, st, lds_base=0, wt=''):
    a(f"s_load_dwordx2 s[4:5], s[0:1], {ARG['x']}")
    a(f"s_load_dwordx2 s[6:7], s[0:1], {ARG['ws']}")
    a(f"s_load_dwordx2 s[40:41], s[0:1], {ARG['Dskip']}")
    a("""
    v_lshrrev_b32 v1, 6, v0
    v_and_b32 v2, 63, v0                ; lane
    s_nop 0
    v_readfirstlane_b32 s3, v1          ; wave
    v_and_b32 v3, 7, v2                 ; t
    v_lshrrev_b32 v4, 3, v2             ; cg
    s_waitcnt lgkmcnt(0)
    """)
    st.stamp()
    srd(a, 8, 4, 2048 * 1152)
    srd(a, 12, 6, 2048 * 8, WS_STATS1)
    srd(a, 16, 6, 576 * TS, WS_YT)
    srd(a, 20, 6, 2048 * 1152, WS_H)
    srd(a, 24, 6, 2048 * 1152, WS_HN)
    srd(a, 28, 40, 1152)
    X, Y, D = 16, 24, 32
    a(f"""
    s_mul_i32 s32, s3, 1536
    s_add_u32 s32, s32, {lds_base}
    s_mul_i32 s33, s3, {96*TS}
    s_lshl_b32 s34, s2, 4               ; t0*2
    s_add_u32 s33, s33, s34
    v_and_b32 v5, 0x38, v2              ; 8G
    v_and_b32 v6, 1, v2
    v_lshl_add_u32 v5, v6, 2, v5
    v_bfe_u32 v6, v2, 1, 2
    v_add_u32 v5, v5, v6
    v_mul_u32_u24 v5, {TS}, v5
    """)
    for i in range(2):
        if i == 1:
            a("s_mov_b64 exec, 0xffffffff")
        a(f"s_add_u32 m0, s32, {1024*i}")
        a(f"s_add_u32 s35, s33, {64*TS*i}")
        a(f"buffer_load_dwordx4 v5, s[16:19], s35 offen lds")
    a("s_mov_b64 exec, -1")
    a(f"""
    s_lshl_b32 s34, s2, 3
    v_add_u32 v6, s34, v3               ; row
    v_mul_u32_u24 v7, 1152, v6
    s_mul_i32 s35, s3, 192
    v_lshl_add_u32 v8, v4, 3, s35       ; (96w + 4cg)*2
    v_add_u32 v7, v7, v8
    v_lshlrev_b32 v9, 3, v6
    buffer_load_dwordx2 v[10:11], v9, s[12:15], 0 offen
    """)
    for m in range(NM):
        a(f"buffer_load_dwordx2 v[{X+2*m}:{X+2*m+1}], v7, s[8:11], 0 offen offset:{64*m}")
    for m in range(NM):
        a(f"buffer_load_dwordx2 v[{D+2*m}:{D+2*m+1}], v8, s[28:31], 0 offen offset:{64*m}")
    a(f"""
    v_lshlrev_b32 v12, 3, v2
    v_add_u32 v12, s32, v12
    s_mov_b32 s36, 0xffff0000
    s_mov_b32 s37, {f32hex(1.0/576)}
    s_mov_b32 s38, {f32hex(576.0)}
    s_mov_b32 s39, {f32hex(1e-5)}
    v_lshlrev_b32 v15, 5, v3            ; t*32
    v_lshl_add_u32 v14, v1, 2, v15      ; t*32 + w*4
    s_waitcnt vmcnt({1+2*NM})
    """)
    st.stamp()
    for m in range(NM):
        a(f"ds_read_b64_tr_b16 v[{Y+2*m}:{Y+2*m+1}], v12 offset:{512*m}")
    a(f"s_waitcnt vmcnt({2*NM})")
    a("v_rcp_f32 v13, v11")
    H = 48
    a("s_waitcnt vmcnt(0) lgkmcnt(0)")
    st.stamp()
    for dw in range(2 * NM):
        x, y, d = X + dw, Y + dw, D + dw
        h0, h1 = H + 2 * dw, H + 2 * dw + 1
        a(f"""
        v_lshlrev_b32 v{h0}, 16, v{x}
        v_and_b32 v{h1}, s36, v{x}
        v_sub_f32 v84, v{h0}, v10
        v_sub_f32 v85, v{h1}, v10
        v_cvt_pk_bf16_f32 v86, v84, v85
        v_lshlrev_b32 v84, 16, v86
        v_and_b32 v85, s36, v86
        v_mul_f32 v86, v84, v13
        v_mul_f32 v87, v85, v13
        v_fma_f32 v88, -v86, v11, v84
        v_fma_f32 v89, -v87, v11, v85
        v_fma_f32 v86, v88, v13, v86
        v_fma_f32 v87, v89, v13, v87
        v_cvt_pk_bf16_f32 v86, v86, v87     ; u (bf16 x2)
        v_lshlrev_b32 v84, 16, v86
        v_and_b32 v85, s36, v86
        v_lshlrev_b32 v86, 16, v{d}
        v_and_b32 v87, s36, v{d}
        v_mul_f32 v84, v84, v86
        v_mul_f32 v85, v85, v87
        v_cvt_pk_bf16_f32 v86, v84, v85     ; u*D
        v_lshlrev_b32 v84, 16, v86
        v_and_b32 v85, s36, v86
        v_lshlrev_b32 v86, 16, v{y}
        v_and_b32 v87, s36, v{y}
        v_add_f32 v84, v84, v86
        v_add_f32 v85, v85, v87
        v_cvt_pk_bf16_f32 v86, v84, v85     ; y + u*D
        v_lshlrev_b32 v84, 16, v86
        v_and_b32 v85, s36, v86
        v_add_f32 v84, v84, v{h0}
        v_add_f32 v85, v85, v{h1}
        v_cvt_pk_bf16_f32 v{x}, v84, v85
        v_lshlrev_b32 v{h0}, 16, v{x}
        v_and_b32 v{h1}, s36, v{x}
        """)
        if dw % 2 == 1:
            m = dw // 2
            a(f"buffer_store_dwordx2 v[{X+2*m}:{X+2*m+1}], v7, s[20:23], 0 offen offset:{64*m}")
    st.stamp()
    RED = NW * 1536
    a(f"v_add_u32 v14, {lds_base}, v14")
    a(f"v_add_u32 v15, {lds_base}, v15")
    def reduce(dst, slot):
        a(f"""
        s_nop 1
        v_add_f32_dpp v85, v84, v84 row_ror:8 row_mask:0xf bank_mask:0xf
        v_mov_b32 v84, v85
        s_nop 1
        v_permlane32_swap_b32 v84, v85
        s_nop 1
        v_add_f32 v84, v84, v85
        v_mov_b32 v85, v84
        s_nop 1
        v_permlane16_swap_b32 v84, v85
        s_nop 1
        v_add_f32 v84, v84, v85
        ds_write_b32 v14, v84 offset:{RED + 256*slot}
        s_waitcnt lgkmcnt(0)
        s_barrier
        ds_read_b128 v[84:87], v15 offset:{RED + 256*slot}
        ds_read_b64 v[88:89], v15 offset:{RED + 256*slot + 16}
        s_waitcnt lgkmcnt(0)
        v_add_f32 v84, v84, v85
        v_add_f32 v86, v86, v87
        v_add_f32 v88, v88, v89
        v_add_f32 v85, v84, v86
        v_add_f32 v85, v85, v88
        v_mul_f32 v84, s37, v85
        v_fma_f32 v86, -v84, s38, v85
        v_fma_f32 {dst}, v86, s37, v84
        """)
    NH = 4 * NM
    a(f"v_add_f32 v84, v{H}, v{H+1}")
    a(f"v_add_f32 v85, v{H+2}, v{H+3}")
    for k in range(4, NH, 2):
        a(f"v_add_f32 v84, v84, v{H+k}")
        a(f"v_add_f32 v85, v85, v{H+k+1}")
    a("v_add_f32 v84, v84, v85")
    reduce("v90", 0)
    a(f"v_sub_f32 v86, v{H}, v90")
    a(f"v_sub_f32 v87, v{H+1}, v90")
    a("v_mul_f32 v84, v86, v86")
    a("v_mul_f32 v85, v87, v87")
    for k in range(2, NH, 2):
        a(f"v_sub_f32 v86, v{H+k}, v90")
        a(f"v_sub_f32 v87, v{H+k+1}, v90")
        a("v_fma_f32 v84, v86, v86, v84")
        a("v_fma_f32 v85, v87, v87, v85")
    a("v_add_f32 v84, v84, v85")
    reduce("v91", 1)
    st.stamp()
    a(f"""
    v_cvt_pk_bf16_f32 v84, v90, v91
    v_lshlrev_b32 v90, 16, v84          ; m_b
    v_and_b32 v91, s36, v84
    v_add_f32 v91, s39, v91
    v_cvt_pk_bf16_f32 v84, v91, v91
    v_lshlrev_b32 v91, 16, v84
    v_sqrt_f32 v91, v91
    s_nop 0
    v_cvt_pk_bf16_f32 v84, v91, v91
    v_lshlrev_b32 v91, 16, v84          ; s
    v_rcp_f32 v92, v91
    v_and_b32 v85, 15, v6               ; r
    v_lshrrev_b32 v84, 2, v85
    v_sub_u32 v84, 4, v84
    v_and_b32 v84, 3, v84
    v_and_b32 v86, 3, v4
    v_xor_b32 v84, v84, v86
    v_lshlrev_b32 v84, 4, v84
    v_lshl_add_u32 v93, v85, 6, v84
    v_lshrrev_b32 v86, 2, v4
    v_lshl_add_u32 v93, v86, 3, v93
    s_lshr_b32 s42, s2, 1
    s_mul_i32 s42, s42, 18432
    s_mul_i32 s43, s3, 3072
    s_add_u32 s42, s42, s43
    """)
    for m in range(NM):
        for k in range(2):
            dw = 2 * m + k
            h0, h1 = H + 2 * dw, H + 2 * dw + 1
            a(f"""
            v_sub_f32 v{h0}, v{h0}, v90
            v_sub_f32 v{h1}, v{h1}, v90
            v_cvt_pk_bf16_f32 v84, v{h0}, v{h1}
            v_lshlrev_b32 v{h0}, 16, v84
            v_and_b32 v{h1}, s36, v84
            v_mul_f32 v84, v{h0}, v92
            v_mul_f32 v85, v{h1}, v92
            v_fma_f32 v86, -v84, v91, v{h0}
            v_fma_f32 v87, -v85, v91, v{h1}
            v_fma_f32 v84, v86, v92, v84
            v_fma_f32 v85, v87, v92, v85
            v_cvt_pk_bf16_f32 v{Y+dw}, v84, v85
            """)
        a(f"buffer_store_dwordx2 v[{Y+2*m}:{Y+2*m+1}], v93, s[24:27], s42 offen offset:{1024*m}" + wt)


def ln2_embedded(a, lds_base, voff=100, soff=52, wt=" sc1"):
    t = Asm()
    ln2_body(t, Stamps(t, False), lds_base, wt)
    def rv(m):
        n = int(m.group(1)); return f"v{n + voff}" if n >= 1 else "v0"
    def rvr(m):
        return f"v[{int(m.group(1)) + voff}:{int(m.group(2)) + voff}]"
    def rs(m):
        n = int(m.group(1)); return f"s{n + soff}" if n >= 2 else f"s{n}"
    def rsr(m):
        x, y = int(m.group(1)), int(m.group(2))
        return f"s[{x + soff}:{y + soff}]" if x >= 2 else m.group(0)
    for ln in t.lines:
        code, _, com = ln.partition(";")
        code = re.sub(r"\bv\[(\d+):(\d+)\]", rvr, code)
        code = re.sub(r"\bv(\d+)\b", rv, code)
        code = re.sub(r"\bs\[(\d+):(\d+)\]", rsr, code)
        code = re.sub(r"\bs(\d+)\b", rs, code)
        a.lines.append(code.rstrip())
```

```python
from gen_common import *
from gen_ln1 import ln1_body
from gen_kgen import kgen_body, KG_LDS

PRE_LDS = 53760
NLN = 128
import os
NPF = int(os.environ.get('NPF', '0'))
PRE_GRID = 576 + NLN + NPF

def pre_kernel(a, name, prof=False):
    kernel_header(a, name)
    a(f"s_cmp_ge_u32 s2, {PRE_GRID}")
    a(f"s_cbranch_scc1 {name}_end")
    a(f"s_cmp_ge_u32 s2, {NLN + 576}")
    a(f"s_cbranch_scc1 {name}_pf")
    a(f"s_cmp_ge_u32 s2, {NLN}")
    a(f"s_cbranch_scc1 {name}_kg")
    a("""
    v_lshrrev_b32 v1, 6, v0
    s_nop 0
    v_readfirstlane_b32 s46, v1
    v_and_b32 v0, 63, v0
    s_and_b32 s4, s2, 7
    s_lshr_b32 s2, s2, 3
    s_lshl_b32 s4, s4, 4
    s_add_u32 s2, s2, s4
    """)
    ln1_body(a)
    a(f"s_branch {name}_end")
    a.label(f"{name}_pf")
    a(f"s_load_dwordx4 s[4:7], s[0:1], {ARG['w1']}")
    a(f"s_sub_u32 s2, s2, {NLN + 576}")
    a("s_cmp_ge_u32 s2, 81")
    a("s_cselect_b32 s3, 81, 0")
    a("s_sub_u32 s3, s2, s3")
    a("s_lshl_b32 s3, s3, 16")
    a("v_lshlrev_b32 v1, 4, v0")
    a("s_waitcnt lgkmcnt(0)")
    a("s_cmp_ge_u32 s2, 81")
    a("s_cselect_b32 s8, s6, s4")
    a("s_cselect_b32 s9, s7, s5")
    a("s_and_b32 s9, s9, 0xffff")
    a(f"s_mov_b32 s10, {576*9216}")
    a("s_mov_b32 s11, 0x00020000")
    for i in range(16):
        a(f"s_add_u32 s12, s3, {4096*i}")
        a(f"buffer_load_dwordx4 v[{4+4*i}:{7+4*i}], v1, s[8:11], s12 offen")
    a("s_waitcnt vmcnt(0)")
    a(f"s_branch {name}_end")
    a.label(f"{name}_kg")
    a(f"s_sub_u32 s2, s2, {NLN}")
    kgen_body(a, name, 2, prof)
    a.label(f"{name}_end")
    a("s_endpgm")
    return kernel_desc(name, 144, sgpr=102)
```

```python
from gen_common import *
from gen_ln1 import ln1_body
from gen_kgen import kgen_body
from gen_gemm2 import w2pack_body

CSTR = 4384
KB = 8 * CSTR
FRONT_LDS = 40960
NLN = 128
import os
SLEEP = int(os.environ.get('FSLEEP', '8'))
FRONT_GRID = NLN + 576 + 144

def front_kernel(a, name, prof=False):
    kernel_header(a, name)
    a(f"s_cmp_ge_u32 s2, {FRONT_GRID}")
    a(f"s_cbranch_scc1 {name}_end")
    a(f"s_cmp_ge_u32 s2, {NLN+576}")
    a(f"s_cbranch_scc1 {name}_wp")
    a(f"s_cmp_ge_u32 s2, {NLN}")
    a(f"s_cbranch_scc1 {name}_ch")
    a(f"""
    s_load_dwordx2 s[44:45], s[0:1], {ARG['dbg']}
    v_lshrrev_b32 v1, 6, v0
    s_nop 0
    v_readfirstlane_b32 s46, v1
    v_and_b32 v0, 63, v0
    s_and_b32 s4, s2, 7
    s_lshr_b32 s2, s2, 3
    s_lshl_b32 s4, s4, 4
    s_add_u32 s2, s2, s4
    """)
    sl = Stamps(a, prof, kid=5, vr=130)
    sl.stamp()
    ln1_body(a, wt=True)
    sl.stamp()
    a("s_waitcnt vmcnt(0)")
    sl.stamp()
    a(f"""
    s_barrier
    s_cmp_lg_u32 s46, 0
    s_cbranch_scc1 {name}_end
    v_mov_b32 v1, 1
    v_mov_b32 v2, 0
    """)
    sl.stamp()
    a(f"""
    s_mov_b64 exec, 1
    global_atomic_add v3, v2, v1, s[44:45] sc0 sc1
    s_waitcnt vmcnt(0)
    v_readfirstlane_b32 s4, v3
    s_cmp_lg_u32 s4, {NLN-1}
    s_cbranch_scc1 {name}_lnx
    global_store_dword v2, v1, s[44:45] offset:128 sc0 sc1
    """)
    a.label(f"{name}_lnx")
    sl.dump(6, 46, 1)
    a(f"s_branch {name}_end")
    a.label(f"{name}_wp")
    a(f"s_sub_u32 s2, s2, {NLN+576}")
    w2pack_body(a, name + "_wp0", 2)
    a(f"s_branch {name}_end")
    a.label(f"{name}_ch")
    a(f"s_sub_u32 s2, s2, {NLN}")
    a(f"s_load_dwordx2 s[44:45], s[0:1], {ARG['dbg']}")
    st = kgen_body(a, name, 2, prof, fused=True)
    a(f"""
    v_lshlrev_b32 v6, 4, v0             ; tid*16
    v_readfirstlane_b32 s32, v14
    v_readfirstlane_b32 s3, v1          ; wave
    ds_write_b128 v6, v[32:35] offset:{KB}
    v_mov_b32 v36, 0
    v_mov_b32 v37, 0
    v_mov_b32 v38, 0
    v_mov_b32 v39, 0
    v_cmp_gt_u32 vcc, 16, v0
    s_and_saveexec_b64 s[24:25], vcc
    ds_write_b128 v6, v[36:39] offset:{KB + 4096}
    s_mov_b64 exec, -1
    """)
    srd(a, 8, 22, 576 * TS, WS_UT)
    srd(a, 16, 22, 576 * TS, WS_YT)
    a(f"s_mul_i32 s28, s2, {TS}")
    a("v_mov_b32 v2, 0")
    a("s_cmp_lg_u32 s3, 0")
    a(f"s_cbranch_scc1 {name}_go")
    a.label(f"{name}_poll")
    a(f"""
    global_load_dword v3, v2, s[44:45] offset:128 sc1
    s_waitcnt vmcnt(0)
    v_readfirstlane_b32 s4, v3
    s_cmp_ge_u32 s4, 1
    s_cbranch_scc1 {name}_go
    s_sleep {SLEEP}
    s_branch {name}_poll
    """)
    a.label(f"{name}_go")
    a(f"""
    s_waitcnt lgkmcnt(0)
    s_barrier
    buffer_load_dwordx4 v[8:11], v6, s[8:11], s28 offen sc1
    """)
    st.stamp()
    a(f"""
    v_cmp_gt_u32 vcc, 18, v0
    s_and_saveexec_b64 s[24:25], vcc
    ds_write_b128 v6, v[36:39] offset:{7*CSTR-32}
    s_mov_b64 exec, -1
    s_waitcnt vmcnt(0)
    ds_write_b128 v6, v[8:11] offset:{7*CSTR + 256}
    v_and_b32 v2, 63, v0
    v_and_b32 v40, 15, v2               ; n / j
    v_lshrrev_b32 v41, 4, v2            ; g
    v_sub_u32 v42, v41, v40
    v_lshlrev_b32 v42, 4, v42
    v_add_u32 v42, {KB + 240}, v42      ; v42 = kaddr
    v_and_b32 v43, 3, v40
    v_lshrrev_b32 v44, 3, v40
    v_lshl_add_u32 v43, v44, 2, v43     ; p
    v_lshrrev_b32 v45, 2, v40
    v_xor_b32 v45, v45, v44
    v_and_b32 v45, 1, v45               ; q
    v_mul_u32_u24 v43, {CSTR}, v43
    v_lshl_add_u32 v43, v45, 8, v43
    v_lshl_add_u32 v43, v41, 4, v43     ; v43 = uaddr
    v_lshrrev_b32 v44, 1, v41
    v_xor_b32 v45, v41, v44
    v_and_b32 v45, 1, v45
    v_lshlrev_b32 v46, 4, v40
    v_lshl_add_u32 v46, v45, 8, v46
    v_lshl_add_u32 v46, v44, 3, v46
    s_waitcnt lgkmcnt(0)
    s_barrier
    """)
    st.stamp()
    for k in range(2):
        W = 48 + 8 * k
        if k == 1:
            a("v_cmp_gt_u32 vcc, 16, v0")
            a("s_and_saveexec_b64 s[24:25], vcc")
            a(f"s_cbranch_execz {name}_bdone")
        a(f"ds_read_b128 v[{W}:{W+3}], v6 offset:{7*CSTR - 16 + 4096*k}")
        a(f"ds_read_b128 v[{W+4}:{W+7}], v6 offset:{7*CSTR + 4096*k}")
        a("s_waitcnt lgkmcnt(0)")
        for p in range(7):
            s = p + 1
            dst = 8 + 4 * p
            j0 = s // 2
            if s % 2 == 1:
                for q in range(4):
                    a(f"v_alignbit_b32 v{dst+q}, v{W+j0+q+1}, v{W+j0+q}, 16")
                a(f"ds_write_b128 v6, v[{dst}:{dst+3}] offset:{p*CSTR + 4096*k}")
            elif j0 % 2 == 0:
                a(f"ds_write_b128 v6, v[{W+j0}:{W+j0+3}] offset:{p*CSTR + 4096*k}")
            else:
                for q in range(4):
                    a(f"v_mov_b32 v{dst+q}, v{W+j0+q}")
                a(f"ds_write_b128 v6, v[{dst}:{dst+3}] offset:{p*CSTR + 4096*k}")
    a.label(f"{name}_bdone")
    a("""
    s_mov_b64 exec, -1
    s_waitcnt lgkmcnt(0)
    s_barrier
    """)
    st.stamp()
    a(f"""
    v_mov_b32 v4, v42
    v_mov_b32 v5, v43
    v_mov_b32 v7, v46
    s_lshr_b32 s4, s3, 1
    s_and_b32 s5, s2, 1
    s_cmp_lg_u32 s4, s5
    s_cbranch_scc1 {name}_fin
    s_and_b32 s4, s3, 1
    s_cmp_eq_u32 s4, 1
    s_cbranch_scc1 {name}_mB
    """)
    for path, tiles in (("A", [0, 3, 4, 7]), ("B", [1, 2, 5, 6])):
        if path == "B":
            a.label(f"{name}_mB")
        ACC = 16
        FR = [32, 96]
        nf = max(tiles) + 1
        for r in range(16):
            a(f"v_mov_b32 v{ACC+r}, 0")
        lg = Cnt(a, "lgkmcnt")
        def rd_k(e, g):
            b = FR[e & 1]
            a(f"ds_read_b128 v[{b+4*g}:{b+4*g+3}], v4 offset:{512*(7-g) + 64*(7-e)}")
            lg.issue(("k", e, g))
        def rd_u(e, g):
            b = FR[e & 1]
            a(f"ds_read_b128 v[{b+32+4*g}:{b+32+4*g+3}], v5 offset:{512*g + 64*(7-e)}")
            lg.issue(("u", e, g))
        for g in range(nf):
            rd_k(0, g); rd_u(0, g)
        for e in range(8):
            b = FR[e & 1]
            fill = []
            if e < 7:
                for g in range(nf):
                    fill += [(rd_k, g), (rd_u, g)]
            for ti, tau in enumerate(tiles):
                for gam in range(tau + 1):
                    beta = tau - gam
                    lg.need(("k", e, gam), ("u", e, beta))
                    c = ACC + 4 * ti
                    a(f"v_mfma_f32_16x16x32_f16 v[{c}:{c+3}], v[{b+32+4*beta}:{b+32+4*beta+3}], v[{b+4*gam}:{b+4*gam+3}], v[{c}:{c+3}]")
                    if fill:
                        f, g = fill.pop(0); f(e + 1, g)
        a("s_nop 7")
        for ti, tau in enumerate(tiles):
            c = ACC + 4 * ti
            for r in range(4):
                a(f"v_mul_f32 v{c+r}, s32, v{c+r}")
            a(f"v_cvt_pk_bf16_f32 v{8+2*ti}, v{c}, v{c+1}")
            a(f"v_cvt_pk_bf16_f32 v{9+2*ti}, v{c+2}, v{c+3}")
            a(f"buffer_store_dwordx2 v[{8+2*ti}:{9+2*ti}], v7, s[16:19], s28 offen offset:{512*tau}")
        if path == "A":
            a(f"s_branch {name}_fin")
    a.label(f"{name}_fin")
    st.stamp()
    st.dump(22, 3, 4)
    a.label(f"{name}_end")
    a("s_endpgm")
    return kernel_desc(name, 164, sgpr=102)
```

```python
import sys
from gen_common import *
from gen_ln import ln_kernel
from gen_kgen import KG_LDS
from gen_conv2 import conv_kernel, CONV_LDS, CONV_GRID
from gen_gemm1 import gemm1_kernel, G1_LDS, FUSE
from gen_pre import pre_kernel, PRE_LDS, PRE_GRID
from gen_ln2 import ln2_kernel, LN2_LDS, LN2_BLOCK, LN2_GRID
from gen_gemm2 import gemm2_kernel, G2_LDS

import os
PROF = bool(os.environ.get('PROF'))
FRONT = int(os.environ.get('FRONT', '0'))
from gen_front import front_kernel, FRONT_LDS, FRONT_GRID
def main(out):
    hdr = open("sequential_preLN__ssm_conv_s4__glu_gated_swiglu__prompt.s.ref").read().split("; Override launch geometry")[0]
    a = Asm()
    descs = []
    launches = [
        *([("front_kernel", FRONT_GRID, 256, FRONT_LDS)] if FRONT else [("pre_kernel", PRE_GRID, 256, PRE_LDS), ("conv_kernel", CONV_GRID, 256, CONV_LDS)]),
        *([] if FUSE else [("ln2_kernel", LN2_GRID, LN2_BLOCK, LN2_LDS)]),
        ("gemm1_kernel", 256, 512, G1_LDS),
        ("gemm2_kernel", 256, 512, G2_LDS),
    ]
    if FRONT:
        descs.append(front_kernel(a, "front_kernel", prof=PROF))
    else:
        descs.append(pre_kernel(a, "pre_kernel", prof=PROF))
        descs.append(conv_kernel(a, "conv_kernel", prof=PROF))
    if not FUSE: descs.append(ln2_kernel(a, "ln2_kernel", prof=PROF))
    descs.append(gemm1_kernel(a, "gemm1_kernel", prof=PROF))
    descs.append(gemm2_kernel(a, "gemm2_kernel", prof=PROF))
    s = hdr
    for n, g, b, l in launches:
        s += f"; @launch kernel={n} grid=({g},1,1) block=({b},1,1) lds={l}\n"
    s += '.amdgcn_target "amdgcn-amd-amdhsa--gfx950"\n.text\n'
    s += a.text()
    s += '.section .rodata,"a"\n'
    for d in descs:
        s += ".p2align 6\n" + d
    open(out, "w").write(s)
main(sys.argv[1] if len(sys.argv) > 1 else "sequential_preLN__ssm_conv_s4__glu_gated_swiglu__prompt.s")
```

```python
from gen_common import *
from gen_ln1 import ln1_body
from gen_kgen import kgen_body
import os
if int(os.environ.get('G2E', '0')):
    from gen_gemm2e import w2pack_body
else:
    from gen_gemm2 import w2pack_body

CSTR = 4384
KB = 8 * CSTR
FRONT_LDS = 40960
NLN = 128
import os
SLEEP = int(os.environ.get('FSLEEP', '8'))
FRONT_GRID = NLN + 576 + 144

def front_kernel(a, name, prof=False):
    kernel_header(a, name)
    a(f"s_cmp_ge_u32 s2, {FRONT_GRID}")
    a(f"s_cbranch_scc1 {name}_end")
    a(f"s_cmp_ge_u32 s2, {NLN+576}")
    a(f"s_cbranch_scc1 {name}_wp")
    a(f"s_cmp_ge_u32 s2, {NLN}")
    a(f"s_cbranch_scc1 {name}_ch")
    a(f"""
    s_load_dwordx2 s[44:45], s[0:1], {ARG['dbg']}
    v_lshrrev_b32 v1, 6, v0
    s_nop 0
    v_readfirstlane_b32 s46, v1
    v_and_b32 v0, 63, v0
    s_and_b32 s4, s2, 7
    s_lshr_b32 s2, s2, 3
    s_lshl_b32 s4, s4, 4
    s_add_u32 s2, s2, s4
    """)
    sl = Stamps(a, prof, kid=5, vr=130)
    sl.stamp()
    ln1_body(a, wt=True)
    sl.stamp()
    a("s_waitcnt vmcnt(0)")
    sl.stamp()
    a(f"""
    s_barrier
    s_cmp_lg_u32 s46, 0
    s_cbranch_scc1 {name}_end
    v_mov_b32 v1, 1
    v_mov_b32 v2, 0
    """)
    sl.stamp()
    a(f"""
    s_mov_b64 exec, 1
    global_atomic_add v3, v2, v1, s[44:45] sc0 sc1
    s_waitcnt vmcnt(0)
    v_readfirstlane_b32 s4, v3
    s_cmp_lg_u32 s4, {NLN-1}
    s_cbranch_scc1 {name}_lnx
    global_store_dword v2, v1, s[44:45] offset:128 sc1
    """)
    a.label(f"{name}_lnx")
    sl.dump(6, 46, 1)
    a(f"s_branch {name}_end")
    a.label(f"{name}_wp")
    a(f"s_sub_u32 s2, s2, {NLN+576}")
    w2pack_body(a, name + "_wp0", 2)
    a(f"s_branch {name}_end")
    a.label(f"{name}_ch")
    a(f"s_sub_u32 s2, s2, {NLN}")
    a(f"s_load_dwordx2 s[44:45], s[0:1], {ARG['dbg']}")
    st = kgen_body(a, name, 2, prof, fused=True)
    a(f"""
    v_lshlrev_b32 v6, 4, v0             ; tid*16
    v_readfirstlane_b32 s32, v14
    v_readfirstlane_b32 s3, v1          ; wave
    ds_write_b128 v6, v[32:35] offset:{KB}
    v_mov_b32 v36, 0
    v_mov_b32 v37, 0
    v_mov_b32 v38, 0
    v_mov_b32 v39, 0
    v_cmp_gt_u32 vcc, 16, v0
    s_and_saveexec_b64 s[24:25], vcc
    ds_write_b128 v6, v[36:39] offset:{KB + 4096}
    s_mov_b64 exec, -1
    """)
    srd(a, 8, 22, 576 * TS, WS_UT)
    srd(a, 16, 22, 576 * TS, WS_YT)
    a(f"s_mul_i32 s28, s2, {TS}")
    a("v_mov_b32 v2, 0")
    a("s_mov_b32 s5, 0")
    a("s_cmp_lg_u32 s3, 0")
    a(f"s_cbranch_scc1 {name}_go")
    a.label(f"{name}_poll")
    a(f"""
    global_load_dword v3, v2, s[44:45] offset:128 sc1
    s_waitcnt vmcnt(0)
    v_readfirstlane_b32 s4, v3
    s_add_u32 s5, s5, 1
    s_cmp_ge_u32 s5, 0x40000
    s_cbranch_scc1 {name}_go
    s_cmp_ge_u32 s4, 1
    s_cbranch_scc1 {name}_go
    s_sleep {SLEEP}
    s_branch {name}_poll
    """)
    a.label(f"{name}_go")
    a(f"""
    s_waitcnt lgkmcnt(0)
    s_barrier
    buffer_load_dwordx4 v[8:11], v6, s[8:11], s28 offen sc1
    """)
    st.stamp()
    a(f"""
    v_cmp_gt_u32 vcc, 18, v0
    s_and_saveexec_b64 s[24:25], vcc
    ds_write_b128 v6, v[36:39] offset:{7*CSTR-32}
    s_mov_b64 exec, -1
    s_waitcnt vmcnt(0)
    ds_write_b128 v6, v[8:11] offset:{7*CSTR + 256}
    v_and_b32 v2, 63, v0
    v_and_b32 v40, 15, v2               ; n / j
    v_lshrrev_b32 v41, 4, v2            ; g
    v_sub_u32 v42, v41, v40
    v_lshlrev_b32 v42, 4, v42
    v_add_u32 v42, {KB + 240}, v42      ; v42 = kaddr
    v_and_b32 v43, 3, v40
    v_lshrrev_b32 v44, 3, v40
    v_lshl_add_u32 v43, v44, 2, v43     ; p
    v_lshrrev_b32 v45, 2, v40
    v_xor_b32 v45, v45, v44
    v_and_b32 v45, 1, v45               ; q
    v_mul_u32_u24 v43, {CSTR}, v43
    v_lshl_add_u32 v43, v45, 8, v43
    v_lshl_add_u32 v43, v41, 4, v43     ; v43 = uaddr
    v_lshrrev_b32 v44, 1, v41
    v_xor_b32 v45, v41, v44
    v_and_b32 v45, 1, v45
    v_lshlrev_b32 v46, 4, v40
    v_lshl_add_u32 v46, v45, 8, v46
    v_lshl_add_u32 v46, v44, 3, v46
    s_waitcnt lgkmcnt(0)
    s_barrier
    """)
    st.stamp()
    for k in range(2):
        W = 48 + 8 * k
        if k == 1:
            a("v_cmp_gt_u32 vcc, 16, v0")
            a("s_and_saveexec_b64 s[24:25], vcc")
            a(f"s_cbranch_execz {name}_bdone")
        a(f"ds_read_b128 v[{W}:{W+3}], v6 offset:{7*CSTR - 16 + 4096*k}")
        a(f"ds_read_b128 v[{W+4}:{W+7}], v6 offset:{7*CSTR + 4096*k}")
        a("s_waitcnt lgkmcnt(0)")
        for p in range(7):
            s = p + 1
            dst = 8 + 4 * p
            j0 = s // 2
            if s % 2 == 1:
                for q in range(4):
                    a(f"v_alignbit_b32 v{dst+q}, v{W+j0+q+1}, v{W+j0+q}, 16")
                a(f"ds_write_b128 v6, v[{dst}:{dst+3}] offset:{p*CSTR + 4096*k}")
            elif j0 % 2 == 0:
                a(f"ds_write_b128 v6, v[{W+j0}:{W+j0+3}] offset:{p*CSTR + 4096*k}")
            else:
                for q in range(4):
                    a(f"v_mov_b32 v{dst+q}, v{W+j0+q}")
                a(f"ds_write_b128 v6, v[{dst}:{dst+3}] offset:{p*CSTR + 4096*k}")
    a.label(f"{name}_bdone")
    a("""
    s_mov_b64 exec, -1
    s_waitcnt lgkmcnt(0)
    s_barrier
    """)
    st.stamp()
    a(f"""
    v_mov_b32 v4, v42
    v_mov_b32 v5, v43
    v_mov_b32 v7, v46
    s_lshr_b32 s4, s3, 1
    s_and_b32 s5, s2, 1
    s_cmp_lg_u32 s4, s5
    s_cbranch_scc1 {name}_fin
    s_and_b32 s4, s3, 1
    s_cmp_eq_u32 s4, 1
    s_cbranch_scc1 {name}_mB
    """)
    for path, tiles in (("A", [0, 3, 4, 7]), ("B", [1, 2, 5, 6])):
        if path == "B":
            a.label(f"{name}_mB")
        ACC = 16
        FR = [32, 96]
        nf = max(tiles) + 1
        for r in range(16):
            a(f"v_mov_b32 v{ACC+r}, 0")
        lg = Cnt(a, "lgkmcnt")
        def rd_k(e, g):
            b = FR[e & 1]
            a(f"ds_read_b128 v[{b+4*g}:{b+4*g+3}], v4 offset:{512*(7-g) + 64*(7-e)}")
            lg.issue(("k", e, g))
        def rd_u(e, g):
            b = FR[e & 1]
            a(f"ds_read_b128 v[{b+32+4*g}:{b+32+4*g+3}], v5 offset:{512*g + 64*(7-e)}")
            lg.issue(("u", e, g))
        for g in range(nf):
            rd_k(0, g); rd_u(0, g)
        for e in range(8):
            b = FR[e & 1]
            fill = []
            if e < 7:
                for g in range(nf):
                    fill += [(rd_k, g), (rd_u, g)]
            for ti, tau in enumerate(tiles):
                for gam in range(tau + 1):
                    beta = tau - gam
                    lg.need(("k", e, gam), ("u", e, beta))
                    c = ACC + 4 * ti
                    a(f"v_mfma_f32_16x16x32_f16 v[{c}:{c+3}], v[{b+32+4*beta}:{b+32+4*beta+3}], v[{b+4*gam}:{b+4*gam+3}], v[{c}:{c+3}]")
                    if fill:
                        f, g = fill.pop(0); f(e + 1, g)
        a("s_nop 7")
        for ti, tau in enumerate(tiles):
            c = ACC + 4 * ti
            for r in range(4):
                a(f"v_mul_f32 v{c+r}, s32, v{c+r}")
            a(f"v_cvt_pk_bf16_f32 v{8+2*ti}, v{c}, v{c+1}")
            a(f"v_cvt_pk_bf16_f32 v{9+2*ti}, v{c+2}, v{c+3}")
            a(f"buffer_store_dwordx2 v[{8+2*ti}:{9+2*ti}], v7, s[16:19], s28 offen offset:{512*tau}")
        if path == "A":
            a(f"s_branch {name}_fin")
    a.label(f"{name}_fin")
    st.stamp()
    st.dump(22, 3, 4)
    a.label(f"{name}_end")
    a("s_endpgm")
    return kernel_desc(name, 164, sgpr=102)
```

```python
from gen_common import *

E_SLOT = 16384 + 18432
E_LDS = 4 * E_SLOT
ENST = 18
import os
EPOL = os.environ.get('EPOL', 'sc1')

def gemm2e_kernel(a, name, prof=False):
    kernel_header(a, name)
    a("s_cmp_ge_u32 s2, 256")
    a(f"s_cbranch_scc1 {name}_end")
    a(f"s_load_dwordx2 s[6:7], s[0:1], {ARG['out']}")
    a(f"s_load_dwordx2 s[8:9], s[0:1], {ARG['ws']}")
    a("""
    v_lshrrev_b32 v2, 6, v0
    v_and_b32 v1, 63, v0                ; lane
    s_nop 0
    v_readfirstlane_b32 s3, v2          ; wave
    s_and_b32 s10, s2, 7                ; x
    s_lshr_b32 s11, s2, 3               ; j
    s_and_b32 s12, s11, 3               ; cb
    s_lshr_b32 s11, s11, 2
    s_and_b32 s13, s10, 1
    s_lshl_b32 s13, s13, 3
    s_add_u32 s11, s11, s13             ; rb (0..15)
    s_lshr_b32 s10, s10, 1              ; q
    s_and_b32 s13, s3, 3                ; wm
    s_waitcnt lgkmcnt(0)
    """)
    srd(a, 16, 8, 2048 * 9216, WS_HH)
    srd(a, 20, 8, 4 * 144 * 9216, WS_W2P)
    srd(a, 24, 6, 2048 * 1152)
    srd(a, 28, 8, 2048 * 1152, WS_H)
    srd(a, 32, 8, 64 * 16 * 9216, WS_PART)
    srd(a, 36, 8, 64 * 4 * 64, WS_FLG)
    a(f"""
    v_and_b32 v3, 15, v1
    v_lshrrev_b32 v4, 4, v1             ; g
    v_bfe_u32 v5, v1, 2, 2
    v_sub_u32 v5, 4, v5
    v_and_b32 v5, 3, v5
    v_xor_b32 v5, v5, v4
    v_lshlrev_b32 v5, 4, v5
    v_lshl_add_u32 v5, v3, 6, v5
    s_lshl_b32 s14, s13, 11             ; wm*2048
    v_add_u32 v6, s14, v5               ; vXa0
    v_add_u32 v7, {2*E_SLOT}, v6        ; vXa1
    v_lshlrev_b32 v10, 4, v1            ; lane*16
    s_lshr_b32 s14, s3, 2
    s_mul_i32 s14, s14, 5120            ; N0*1024
    v_add_u32 v8, s14, v10              ; vWa0
    v_add_u32 v9, {2*E_SLOT}, v8        ; vWa1
    s_lshl_b32 s15, s11, 2
    s_add_u32 s15, s15, s12
    """)
    a("s_cmp_ge_u32 s3, 4")
    a(f"s_cbranch_scc1 {name}_p1")
    path(a, name, 0, prof)
    a(f"s_branch {name}_end")
    a.label(f"{name}_p1")
    path(a, name, 1, prof)
    a.label(f"{name}_end")
    a("s_endpgm")
    return kernel_desc(name, 200, sgpr=102)

def path(a, name, wn, prof):
    st = Stamps(a, prof, kid=2, vr=196)
    NT = 5 if wn == 0 else 4
    ACC = 16
    FB = [56, 112]
    nd = 4 if wn == 0 else 5
    lg = Cnt(a, "lgkmcnt"); vm = Cnt(a, "vmcnt")
    st.stamp()
    def acc(i, n): return ACC + (n * 2 + i) * 4
    if wn == 0:
        a(f"""
        s_lshl_b32 s40, s11, 3
        s_lshl_b32 s41, s13, 1
        s_add_u32 s40, s40, s41
        s_mul_i32 s40, s40, 144
        s_mul_i32 s41, s10, 36
        s_add_u32 s40, s40, s41
        s_lshl_b32 s40, s40, 10
        s_lshl_b32 s42, s13, 11
        """)
    else:
        a(f"""
        s_mul_i32 s40, s12, 144
        s_mul_i32 s41, s10, 36
        s_add_u32 s40, s40, s41
        s_mul_i32 s40, s40, 9216
        s_mul_i32 s42, s13, 4608
        s_add_u32 s40, s40, s42
        s_add_u32 s42, s42, 16384
        """)
    def dma_piece(s, k):
        slot = s & 3
        if wn == 0:
            h, i = k >> 1, k & 1
            a(f"s_add_u32 m0, s42, {slot*E_SLOT + h*8192 + i*1024}")
            a(f"s_add_u32 s43, s40, {(i*144 + 2*s + h)*1024}")
            a(f"buffer_load_dwordx4 v10, s[16:19], s43 offen lds")
        else:
            a(f"s_add_u32 m0, s42, {slot*E_SLOT + k*1024}")
            a(f"s_add_u32 s43, s40, {s*18432 + k*1024}")
            if k == 4: a("s_mov_b64 exec, 0xffffffff")
            a(f"buffer_load_dwordx4 v10, s[20:23], s43 offen lds")
            if k == 4: a("s_mov_b64 exec, -1")
        vm.issue(("d", s))
    def xread(s, h, i):
        slot = s & 3; base = "v6" if slot < 2 else "v7"
        r = FB[s & 1] + (h * 2 + i) * 4
        a(f"ds_read_b128 v[{r}:{r+3}], {base} offset:{(slot&1)*E_SLOT + h*8192 + i*1024}")
        lg.issue(("x", s, h, i))
    def wread(s, h, n):
        slot = s & 3; base = "v8" if slot < 2 else "v9"
        r = FB[s & 1] + 16 + (h * 5 + n) * 4
        a(f"ds_read_b128 v[{r}:{r+3}], {base} offset:{(slot&1)*E_SLOT + 16384 + h*9216 + n*1024}")
        lg.issue(("w", s, h, n))
    def reads(s):
        L = []
        for h in range(2):
            L += [(xread, (s, h, 0)), (xread, (s, h, 1))] + [(wread, (s, h, n)) for n in range(NT)]
        return L
    for s in range(3):
        for k in range(nd): dma_piece(s, k)
    for r in range(ACC, ACC + NT * 8):
        a(f"v_mov_b32 v{r}, 0")
    vm.need(("d", 0))
    a("s_barrier")
    st.stamp()
    for f, args in reads(0): f(*args)
    for s in range(ENST):
        nxt = s + 1 < ENST
        if nxt:
            vm.need(("d", s + 1))
            a("s_barrier")
        if s in (1, 9): st.stamp()
        fill = reads(s + 1) if nxt else []
        if s + 3 < ENST:
            dm = [(dma_piece, (s + 3, k)) for k in range(nd)]
            f2 = []
            while fill or dm:
                for _ in range(2):
                    if fill: f2.append(fill.pop(0))
                if dm: f2.append(dm.pop(0))
            fill = f2
        b = FB[s & 1]
        for h in range(2):
            for n in range(NT):
                for i in range(2):
                    lg.need(("x", s, h, i), ("w", s, h, n))
                    c = acc(i, n); w = b + 16 + (h * 5 + n) * 4; x = b + (h * 2 + i) * 4
                    a(f"v_mfma_f32_16x16x32_bf16 v[{c}:{c+3}], v[{w}:{w+3}], v[{x}:{x+3}], v[{c}:{c+3}]")
                    if fill:
                        f, args = fill.pop(0); f(*args)
        while fill:
            f, args = fill.pop(0); f(*args)
    st.stamp()
    a(f"""
    s_lshl_b32 s44, s15, 2
    s_add_u32 s44, s44, s13
    s_lshl_b32 s45, s44, 2              ; (group*4+wm)*4
    s_add_u32 s46, s45, s10
    s_mul_i32 s46, s46, 9216
    s_add_u32 s46, s46, {wn*5120}
    s_cmp_eq_u32 s13, s10
    s_cbranch_scc1 {name}_own{wn}
    s_nop 4
    """)
    for n in range(NT):
        c = ACC + 8 * n; R = 56 + 4 * n
        for k in range(4):
            a(f"v_cvt_pk_bf16_f32 v{R+k}, v{c+2*k}, v{c+2*k+1}")
        a(f"s_add_u32 s47, s46, {(n//4)*4096}")
        a(f"buffer_store_dwordx4 v[{R}:{R+3}], v10, s[32:35], s47 offen offset:{(n%4)*1024} sc1")
    a("s_waitcnt vmcnt(0)")
    a("s_barrier")
    if wn == 0:
        a(f"""
        s_lshl_b32 s47, s44, 6
        s_lshl_b32 s48, s10, 2
        s_add_u32 s47, s47, s48
        v_mov_b32 v11, 1
        v_mov_b32 v12, 0
        s_mov_b64 exec, 1
        buffer_store_dword v11, v12, s[36:39], s47 offen sc1
        """)
    a(f"s_branch {name}_fin{wn}")
    a.label(f"{name}_own{wn}")
    a(f"""
    s_lshl_b32 s47, s11, 7
    s_lshl_b32 s48, s13, 5
    s_add_u32 s47, s47, s48
    v_add_u32 v11, s47, v3
    v_mul_u32_u24 v11, 1152, v11
    v_lshl_add_u32 v11, v4, 3, v11
    s_mul_i32 s47, s12, 288
    s_add_u32 s47, s47, {wn*160}
    v_add_u32 v11, s47, v11
    v_add_u32 v12, {16*1152}, v11       ; i=1
    """)
    HR = 168
    for n in range(NT):
        for i in range(2):
            a(f"buffer_load_dwordx2 v[{HR+2*(n*2+i)}:{HR+2*(n*2+i)+1}], v{11+i}, s[28:31], 0 offen offset:{32*n}")
    a("s_barrier")
    a(f"""
    s_lshl_b32 s47, s44, 6
    v_mov_b32 v13, 0
    s_mov_b32 s50, 0
    s_mov_b32 s49, 0xffff0000
    """)
    a.label(f"{name}_poll{wn}")
    a(f"""
    buffer_load_dwordx4 v[56:59], v13, s[36:39], s47 offen sc1
    s_waitcnt vmcnt(0)
    v_add_u32 v56, v56, v57
    v_add3_u32 v56, v56, v58, v59
    s_add_u32 s50, s50, 1
    v_readfirstlane_b32 s48, v56
    s_cmp_ge_u32 s50, 0x40000
    s_cbranch_scc1 {name}_got{wn}
    s_cmp_ge_u32 s48, 3
    s_cbranch_scc1 {name}_got{wn}
    s_sleep 2
    s_branch {name}_poll{wn}
    """)
    a.label(f"{name}_got{wn}")
    st.stamp()
    for d in range(1, 4):
        a(f"""
        s_add_u32 s47, s10, {d}
        s_and_b32 s47, s47, 3
        s_add_u32 s47, s47, s45
        s_mul_i32 s47, s47, 9216
        s_add_u32 s47, s47, {wn*5120}
        """)
        R = 56 + (d - 1) * 20
        for n in range(NT):
            a(f"s_add_u32 s48, s47, {(n//4)*4096}")
            a(f"buffer_load_dwordx4 v[{R+4*n}:{R+4*n+3}], v10, s[32:35], s48 offen offset:{(n%4)*1024} sc1")
    for d in range(1, 4):
        a(f"s_waitcnt vmcnt({(3-d)*NT})")
        R = 56 + (d - 1) * 20
        for n in range(NT):
            c = ACC + 8 * n
            for k in range(4):
                T = 120 + 2 * (k & 1)
                a(f"v_lshlrev_b32 v{T}, 16, v{R+4*n+k}")
                a(f"v_and_b32 v{T+1}, s49, v{R+4*n+k}")
                a(f"v_pk_add_f32 v[{c+2*k}:{c+2*k+1}], v[{c+2*k}:{c+2*k+1}], v[{T}:{T+1}]")
    for n in range(NT):
        for i in range(2):
            t = n * 2 + i
            c = ACC + 4 * t; R = 124 + 4 * (t & 1); h = HR + 2 * t
            a(f"""
            v_cvt_pk_bf16_f32 v{R}, v{c}, v{c+1}
            v_cvt_pk_bf16_f32 v{R+1}, v{c+2}, v{c+3}
            v_lshlrev_b32 v{c}, 16, v{R}
            v_and_b32 v{c+1}, s49, v{R}
            v_lshlrev_b32 v{c+2}, 16, v{R+1}
            v_and_b32 v{c+3}, s49, v{R+1}
            v_lshlrev_b32 v{R}, 16, v{h}
            v_and_b32 v{R+1}, s49, v{h}
            v_lshlrev_b32 v{R+2}, 16, v{h+1}
            v_and_b32 v{R+3}, s49, v{h+1}
            v_pk_add_f32 v[{c}:{c+1}], v[{c}:{c+1}], v[{R}:{R+1}]
            v_pk_add_f32 v[{c+2}:{c+3}], v[{c+2}:{c+3}], v[{R+2}:{R+3}]
            v_cvt_pk_bf16_f32 v{h}, v{c}, v{c+1}
            v_cvt_pk_bf16_f32 v{h+1}, v{c+2}, v{c+3}
            buffer_store_dwordx2 v[{h}:{h+1}], v{11+i}, s[24:27], 0 offen offset:{32*n}
            """)
    a.label(f"{name}_fin{wn}")
    st.stamp()
    st.dump(8, 3, 8)


def w2pack_body(a, name, sblk):
    a(f"s_load_dwordx2 s[4:5], s[0:1], {ARG['w2']}")
    a(f"s_load_dwordx2 s[8:9], s[0:1], {ARG['ws']}")
    a("""
    v_lshrrev_b32 v2, 6, v0
    v_and_b32 v1, 63, v0
    s_nop 0
    v_readfirstlane_b32 s3, v2
    v_lshlrev_b32 v8, 4, v1
    s_waitcnt lgkmcnt(0)
    """)
    srd(a, 16, 4, 4608 * 1152)
    srd(a, 20, 8, 4 * 144 * 9216, WS_W2P)
    srd(a, 24, 8, 64 * 4 * 64, WS_FLG)
    a(f"""
    s_mul_i32 s30, s3, 9216
    s_mul_i32 s31, s{sblk}, 36864
    s_add_u32 s31, s31, s30
    """)
    for i in range(9):
        a(f"s_add_u32 m0, s30, {1024*i}")
        a(f"s_add_u32 s32, s31, {1024*i}")
        a(f"buffer_load_dwordx4 v8, s[16:19], s32 offen lds")
    a(f"""
    v_mov_b32 v12, 0
    v_lshlrev_b32 v13, 2, v0
    s_lshl_b32 s33, s{sblk}, 10
    buffer_store_dword v12, v13, s[24:27], s33 offen
    v_lshrrev_b32 v4, 2, v1
    v_mul_u32_u24 v9, 1152, v4
    v_and_b32 v5, 3, v1
    v_lshl_add_u32 v9, v5, 3, v9
    s_mul_i32 s33, s3, 288
    v_add_u32 v9, s33, v9
    s_mul_i32 s34, s3, {144*9216}
    s_mul_i32 s35, s{sblk}, 9216
    s_add_u32 s34, s34, s35
    s_waitcnt vmcnt(0)
    s_barrier
    """)
    for n in range(9):
        r = 16 + 4 * n
        a(f"ds_read_b64_tr_b16 v[{r}:{r+1}], v9 offset:{n*32}")
        a(f"ds_read_b64_tr_b16 v[{r+2}:{r+3}], v9 offset:{n*32 + 16*1152}")
    for n in range(9):
        r = 16 + 4 * n
        a(f"s_waitcnt lgkmcnt({min(15, 2*(8-n))})")
        a(f"s_add_u32 s35, s34, {(n//4)*4096}")
        a(f"buffer_store_dwordx4 v[{r}:{r+3}], v8, s[20:23], s35 offen offset:{(n%4)*1024}")
```

```python
import sys
from gen_common import *
from gen_ln import ln_kernel
from gen_kgen import KG_LDS
from gen_conv2 import conv_kernel, CONV_LDS, CONV_GRID
from gen_gemm1 import gemm1_kernel, G1_LDS, FUSE
from gen_pre import pre_kernel, PRE_LDS, PRE_GRID
from gen_ln2 import ln2_kernel, LN2_LDS, LN2_BLOCK, LN2_GRID
from gen_gemm2 import gemm2_kernel, G2_LDS

import os
PROF = bool(os.environ.get('PROF'))
FRONT = int(os.environ.get('FRONT', '1'))
G2E = int(os.environ.get('G2E', '0'))
from gen_gemm2e import gemm2e_kernel, E_LDS
from gen_front import front_kernel, FRONT_LDS, FRONT_GRID
def main(out):
    hdr = open("sequential_preLN__ssm_conv_s4__glu_gated_swiglu__prompt.s.ref").read().split("; Override launch geometry")[0]
    a = Asm()
    descs = []
    launches = [
        *([("front_kernel", FRONT_GRID, 256, FRONT_LDS)] if FRONT else [("pre_kernel", PRE_GRID, 256, PRE_LDS), ("conv_kernel", CONV_GRID, 256, CONV_LDS)]),
        *([] if FUSE else [("ln2_kernel", LN2_GRID, LN2_BLOCK, LN2_LDS)]),
        ("gemm1_kernel", 256, 512, G1_LDS),
        ("gemm2_kernel", 256, 512, E_LDS if G2E else G2_LDS),
    ]
    if FRONT:
        descs.append(front_kernel(a, "front_kernel", prof=PROF))
    else:
        descs.append(pre_kernel(a, "pre_kernel", prof=PROF))
        descs.append(conv_kernel(a, "conv_kernel", prof=PROF))
    if not FUSE: descs.append(ln2_kernel(a, "ln2_kernel", prof=PROF))
    descs.append(gemm1_kernel(a, "gemm1_kernel", prof=PROF))
    descs.append((gemm2e_kernel if G2E else gemm2_kernel)(a, "gemm2_kernel", prof=PROF))
    s = hdr
    for n, g, b, l in launches:
        s += f"; @launch kernel={n} grid=({g},1,1) block=({b},1,1) lds={l}\n"
    s += '.amdgcn_target "amdgcn-amd-amdhsa--gfx950"\n.text\n'
    s += a.text()
    s += '.section .rodata,"a"\n'
    for d in descs:
        s += ".p2align 6\n" + d
    open(out, "w").write(s)
main(sys.argv[1] if len(sys.argv) > 1 else "sequential_preLN__ssm_conv_s4__glu_gated_swiglu__prompt.s")
```

```python
from gen_common import *
import math
from gen_ln2 import ln2_embedded

G1_SLOT = 16384 + 2 * 9216
G1_LDS = 4 * G1_SLOT
NST = 18
import os
STMOD = os.environ.get('G1ST', '')
DRY = int(os.environ.get('G1DRY', '0'))
FUSE = int(os.environ.get('G1FUSE', '1'))

def gemm1_kernel(a, name, exact_round=False, prof=False):
    kernel_header(a, name)
    a("s_cmp_ge_u32 s2, 256")
    a(f"s_cbranch_scc1 {name}_end")
    a(f"s_load_dwordx4 s[4:7], s[0:1], {ARG['w1']}")
    a(f"s_load_dwordx2 s[8:9], s[0:1], {ARG['ws']}")
    a("""
    v_lshrrev_b32 v2, 6, v0
    v_and_b32 v1, 63, v0                ; lane
    s_nop 0
    v_readfirstlane_b32 s3, v2          ; wave
    s_and_b32 s10, s2, 7
    s_lshr_b32 s11, s2, 3
    s_and_b32 s12, s11, 3
    s_lshl_b32 s10, s10, 2
    s_add_u32 s10, s10, s12             ; cb
    s_lshr_b32 s11, s11, 2              ; rb
    s_and_b32 s13, s3, 3                ; wm
    s_waitcnt lgkmcnt(0)
    """)
    srd(a, 16, 8, 2048 * 1152, WS_HN)
    srd(a, 24, 8, 2048 * 9216, WS_HH)
    a("""
    s_cmp_ge_u32 s3, 6
    s_cselect_b32 s20, s6, s4
    s_cselect_b32 s21, s7, s5
    s_and_b32 s21, s21, 0xffff
    """)
    a(f"s_mov_b32 s22, {576*9216}")
    a("s_mov_b32 s23, 0x00020000")
    a(f"""
    v_and_b32 v3, 15, v1                ; l&15
    v_lshrrev_b32 v4, 4, v1             ; g
    v_bfe_u32 v5, v1, 2, 2
    v_sub_u32 v5, 4, v5
    v_and_b32 v5, 3, v5
    v_xor_b32 v5, v5, v4
    v_lshlrev_b32 v5, 4, v5
    v_lshl_add_u32 v2, v3, 6, v5
    s_lshl_b32 s14, s13, 12
    v_add_u32 v6, s14, v2               ; vXa0
    v_add_u32 v7, {2*G1_SLOT}, v6       ; vXa1
    v_lshrrev_b32 v4, 2, v1
    v_mul_u32_u24 v8, 288, v4
    v_and_b32 v5, 3, v1
    v_lshl_add_u32 v8, v5, 3, v8
    s_and_b32 s44, s10, 1
    s_xor_b32 s45, s44, 1
    s_lshl_b32 s45, s45, 8
    v_add_u32 v252, s45, v8             ; vW4a0
    v_add_u32 v253, {2*G1_SLOT}, v252   ; vW4a1
    s_lshl_b32 s45, s44, 5
    s_lshr_b32 s46, s3, 2
    s_lshl_b32 s46, s46, 7
    s_add_u32 s45, s45, s46
    v_add_u32 v8, s45, v8
    v_add_u32 v9, {2*G1_SLOT}, v8       ; vWa1
    """)
    a("s_cmp_ge_u32 s3, 4")
    a(f"s_cbranch_scc1 {name}_p1")
    gemm1_path(a, name, 0, exact_round, prof)
    a(f"s_branch {name}_end")
    a.label(f"{name}_p1")
    gemm1_path(a, name, 1, exact_round, prof)
    a.label(f"{name}_end")
    a("s_endpgm")
    return kernel_desc(name, 256, sgpr=102)

def gemm1_path(a, name, wn, exact_round, prof):
    st = Stamps(a, prof, kid=1)
    NT = 5 if wn == 0 else 4
    T0 = 0 if wn == 0 else 5
    VX = [16, 32]
    VW = 48
    ACC = 88
    nd = 4 if wn == 0 else 5
    lg = Cnt(a, "lgkmcnt"); vm = Cnt(a, "vmcnt")
    def acc(i, j, mat):
        return ACC + ((i * NT + j) * 2 + mat) * 4
    if prof and FUSE:
        a("s_memrealtime s[98:99]")
        a("s_memtime s[100:101]")
    else:
        st.stamp()
    if wn == 0:
        a(f"""
        v_lshlrev_b32 v10, 4, v1
        s_lshl_b32 s14, s11, 4
        s_lshl_b32 s15, s13, 2
        s_add_u32 s14, s14, s15
        s_mul_i32 s31, s14, {18*1024}
        s_lshl_b32 s30, s13, 12
        """)
    else:
        a(f"""
        s_and_b32 s14, s3, 1                ; hv
        s_mul_i32 s15, s14, {16*9216}
        s_mul_i32 s31, s10, 288
        s_add_u32 s15, s15, s31
        s_mov_b32 s32, {(1<<32)//18 + 1}
        s_lshr_b32 s33, s13, 1              ; matrix
        s_mul_i32 s30, s33, 9216
        s_mul_i32 s33, s14, 4608
        s_add_u32 s30, s30, s33
        s_add_u32 s30, s30, 16384
        """)
        for i in range(5):
            a(f"""
            v_add_u32 v4, {64*i}, v1
            v_mul_hi_u32 v5, v4, s32            ; row
            v_mul_u32_u24 v15, 18, v5
            v_sub_u32 v4, v4, v15               ; c
            v_mul_u32_u24 v5, 9216, v5
            v_lshl_add_u32 v{10+i}, v4, 4, v5
            v_add_u32 v{10+i}, s15, v{10+i}
            """)
    def dma_piece(s, i):
        slot = s & 3
        if wn == 0:
            a(f"s_add_u32 m0, s30, {slot*G1_SLOT + 1024*i}")
            a(f"s_add_u32 s34, s31, {(i*18 + s)*1024}")
            a(f"buffer_load_dwordx4 v10, s[16:19], s34 offen lds")
        else:
            a(f"s_add_u32 m0, s30, {slot*G1_SLOT + 1024*i}")
            a(f"s_mov_b32 s34, {s*32*9216}")
            if i == 4:
                a("s_mov_b64 exec, 0xffffffff")
            a(f"buffer_load_dwordx4 v{10+i}, s[20:23], s34 offen lds")
            if i == 4:
                a("s_mov_b64 exec, -1")
        vm.issue(("d", s))
    def xread(s, i):
        slot = s & 3
        base = "v6" if slot < 2 else "v7"
        off = (slot & 1) * G1_SLOT
        b = VX[s & 1]
        a(f"ds_read_b128 v[{b+4*i}:{b+4*i+3}], {base} offset:{off + 1024*i}")
        lg.issue(("x", s, i))
    def wread(s, j, mat, h):
        slot = s & 3
        base = "v8" if slot < 2 else "v9"
        if j == 4:
            base = "v252" if slot < 2 else "v253"
        off = (slot & 1) * G1_SLOT + 16384
        r = VW + (j * 2 + mat) * 4 + 2 * h
        o = off + mat * 9216 + (j & 3) * 32 + h * 16 * 288
        a(f"ds_read_b64_tr_b16 v[{r}:{r+1}], {base} offset:{o}")
        lg.issue(("w", s, j, mat, h))
    def fused_ln2():
        a("s_lshl_b32 s54, s11, 5")
        a("s_add_u32 s54, s54, s10")
        if wn == 1:
            a("s_cmp_ge_u32 s3, 6")
            a(f"s_cbranch_scc1 {name}_lnskip")
        ln2_embedded(a, 3 * G1_SLOT)
        if wn == 1:
            a(f"s_branch {name}_lndone")
            a.label(f"{name}_lnskip")
            a("s_barrier")
            a.label(f"{name}_lndone")
        if prof: a("s_memtime s[60:61]")
        a("s_waitcnt vmcnt(0) lgkmcnt(0)")
        if prof: a("s_memtime s[62:63]")
        vm.done = vm.issued
        a("s_barrier")
        if wn == 1:
            for s_ in range(3):
                for i in range(nd):
                    dma_piece(s_, i)
        if prof: a("s_memtime s[64:65]")
        if wn == 0:
            a("s_cmp_lg_u32 s3, 0")
            a(f"s_cbranch_scc1 {name}_go")
            srd(a, 48, 8, 64 * 4 * 64, WS_FLG)
            a(f"""
            s_lshl_b32 s52, s11, 7              ; rb*128
            s_lshl_b32 s53, s10, 2
            s_add_u32 s53, s53, s52
            v_mov_b32 v100, 0
            v_mov_b32 v101, 1
            v_lshlrev_b32 v103, 2, v1
            s_mov_b64 exec, 1
            buffer_store_dword v101, v100, s[48:51], s53 offen sc1
            s_mov_b64 exec, 0xffffffff
            s_mov_b32 s53, 0
            """)
            a.label(f"{name}_poll")
            a(f"""
            buffer_load_dword v102, v103, s[48:51], s52 offen sc1
            s_waitcnt vmcnt(0)
            v_cmp_ne_u32 vcc, 0, v102
            s_add_u32 s53, s53, 1
            s_cmp_ge_u32 s53, 0x40000
            s_cbranch_scc1 {name}_go
            s_cmp_eq_u32 vcc_lo, -1
            s_cbranch_scc1 {name}_go
            s_sleep 1
            s_branch {name}_poll
            """)
            a.label(f"{name}_go")
            a("s_mov_b64 exec, -1")
        a("s_barrier")
        if prof:
            a("s_memtime s[66:67]")
            st.n = 4
    if FUSE:
        fused_ln2()
    if not (FUSE and wn == 1):
        for s in range(3):
            for i in range(nd):
                dma_piece(s, i)
    for r in range(ACC, ACC + 32 * NT):
        a(f"v_mov_b32 v{r}, 0")
    if DRY:
        a("s_mov_b32 s47, 1")
        a("s_mov_b64 exec, 0")
        a(f"s_branch {name}_epi{wn}")
        a.label(f"{name}_back{wn}")
        a("s_mov_b64 exec, -1")
        a("s_mov_b32 s47, 0")
    vm.need(("d", 0))
    a("s_barrier")
    st.stamp()
    for i in range(4):
        xread(0, i)
    for j in range(NT):
        for mat in range(2):
            for h in range(2):
                wread(0, j, mat, h)
    for s in range(NST):
        nxt = s + 1 < NST
        if nxt:
            vm.need(("d", s + 1))
            a("s_barrier")
        if s in (1, 5, 9, 13, 17):
            st.stamp()
        b = VX[s & 1]
        fill = []
        if nxt:
            fill += [("x", i) for i in range(4)]
        if s + 3 < NST:
            dm = [("d", i) for i in range(nd)]
            f2 = []
            while fill or dm:
                if fill: f2.append(fill.pop(0))
                if dm: f2.append(dm.pop(0))
            fill = f2
        pend = []
        groups = [(j, mat) for j in range(NT) for mat in range(2)]
        for gi, (j, mat) in enumerate(groups):
            w = VW + (j * 2 + mat) * 4
            for i in range(4):
                lg.need(("w", s, j, mat, 0), ("w", s, j, mat, 1), ("x", s, i))
                c = acc(i, j, mat)
                a(f"v_mfma_f32_16x16x32_bf16 v[{c}:{c+3}], v[{w}:{w+3}], v[{b+4*i}:{b+4*i+3}], v[{c}:{c+3}]")
                if pend:
                    wread(*pend.pop(0))
                elif fill:
                    k, idx = fill.pop(0)
                    if k == "x": xread(s + 1, idx)
                    else: dma_piece(s + 3, idx)
            if nxt:
                pend += [(s + 1, j, mat, 0), (s + 1, j, mat, 1)]
        while pend:
            wread(*pend.pop(0))
        while fill:
            k, idx = fill.pop(0)
            if k == "x": xread(s + 1, idx)
            else: dma_piece(s + 3, idx)
    st.stamp()
    a.label(f"{name}_epi{wn}")
    a(f"""
    s_lshl_b32 s14, s11, 4
    s_lshl_b32 s15, s13, 2
    s_add_u32 s14, s14, s15
    s_mul_i32 s35, s14, {144*1024}
    s_mul_i32 s36, s10, 9
    s_add_u32 s39, s36, s44
    s_add_u32 s39, s39, {4*wn}
    s_lshl_b32 s39, s39, 9
    s_add_u32 s39, s39, s35
    s_xor_b32 s40, s44, 1
    s_lshl_b32 s40, s40, 3
    s_add_u32 s40, s40, s36
    s_lshr_b32 s40, s40, 1
    s_lshl_b32 s40, s40, 10
    s_lshl_b32 s41, s44, 3
    s_add_u32 s40, s40, s41
    s_add_u32 s40, s40, s35
    s_mov_b32 s42, {f32hex(-math.log2(math.e))}
    s_mov_b32 s43, {f32hex(-math.log2(math.e))}
    s_nop 7
    """)
    def silu_multi(items):
        G = [(acc(i, j, 0), acc(i, j, 1), T, D) for (i, j, T, D) in items]
        for g, u, T, D in G:
            a(f"v_pk_mul_f32 v[{T}:{T+1}], v[{g}:{g+1}], s[42:43]")
            a(f"v_pk_mul_f32 v[{T+2}:{T+3}], v[{g+2}:{g+3}], s[42:43]")
        for g, u, T, D in G:
            for r in range(4): a(f"v_exp_f32 v{T+r}, v{T+r}")
        for g, u, T, D in G:
            a(f"v_pk_mul_f32 v[{g}:{g+1}], v[{g}:{g+1}], v[{u}:{u+1}]")
            a(f"v_pk_mul_f32 v[{g+2}:{g+3}], v[{g+2}:{g+3}], v[{u+2}:{u+3}]")
        for g, u, T, D in G:
            a(f"v_pk_add_f32 v[{T}:{T+1}], v[{T}:{T+1}], 1.0 op_sel_hi:[1,0]")
            a(f"v_pk_add_f32 v[{T+2}:{T+3}], v[{T+2}:{T+3}], 1.0 op_sel_hi:[1,0]")
        for g, u, T, D in G:
            for r in range(4): a(f"v_rcp_f32 v{T+r}, v{T+r}")
        a("s_nop 0")
        for g, u, T, D in G:
            a(f"v_pk_mul_f32 v[{T}:{T+1}], v[{g}:{g+1}], v[{T}:{T+1}]")
            a(f"v_pk_mul_f32 v[{T+2}:{T+3}], v[{g+2}:{g+3}], v[{T+2}:{T+3}]")
        for g, u, T, D in G:
            a(f"v_cvt_pk_bf16_f32 v{D}, v{T}, v{T+1}")
            a(f"v_cvt_pk_bf16_f32 v{D+1}, v{T+2}, v{T+3}")
    k = 0
    for p in range(2):
        for i in range(4):
            T = 16 + 16 * (k & 3); k += 1
            silu_multi([(i, 2 * p, T, T + 8), (i, 2 * p + 1, T + 4, T + 10)])
            a(f"s_add_u32 s41, s39, {i*144*1024 + p*1024}")
            a(f"buffer_store_dwordx4 v[{T+8}:{T+11}], v2, s[24:27], s41 offen")
    if wn == 0:
        for i2 in range(2):
            T = 16 + 16 * (k & 3); k += 1
            silu_multi([(2 * i2, 4, T, T + 8), (2 * i2 + 1, 4, T + 4, T + 10)])
            for q in range(2):
                a(f"s_add_u32 s41, s40, {(2*i2+q)*144*1024}")
                a(f"buffer_store_dwordx2 v[{T+8+2*q}:{T+9+2*q}], v2, s[24:27], s41 offen")
    if DRY:
        a("s_cmp_eq_u32 s47, 1")
        a(f"s_cbranch_scc1 {name}_back{wn}")
    st.stamp()
    if prof:
        a("s_waitcnt vmcnt(0)")
    st.stamp()
    if prof and FUSE:
        a("s_waitcnt lgkmcnt(0)")
        a(f"s_mov_b32 s{st.base + 2*st.n}, s100")
        st.n += 1
    st.dump(8, 3, 8)
```

```python
from gen_common import *

G2_LDS = 163840
NCH = 18
import os
DEPTH = int(os.environ.get('G2DEPTH', '3'))
DMA = int(os.environ.get('G2DMA', '1'))

def gemm2_kernel(a, name, prof=False):
    st = Stamps(a, prof, kid=2)
    kernel_header(a, name)
    a("s_cmp_ge_u32 s2, 256")
    a(f"s_cbranch_scc1 {name}_end")
    a(f"s_load_dwordx2 s[6:7], s[0:1], {ARG['out']}")
    a(f"s_load_dwordx2 s[8:9], s[0:1], {ARG['ws']}")
    a("""
    v_lshrrev_b32 v2, 6, v0
    v_and_b32 v1, 63, v0                ; lane
    s_nop 0
    v_readfirstlane_b32 s3, v2          ; wave
    s_and_b32 s10, s2, 7                ; xcd
    s_lshr_b32 s11, s2, 3               ; j
    s_and_b32 s12, s11, 3
    s_and_b32 s13, s10, 1
    s_lshl_b32 s13, s13, 2
    s_add_u32 s12, s12, s13             ; cbk = 4*(x&1) + (j&3)
    s_lshr_b32 s11, s11, 2
    s_lshr_b32 s10, s10, 1
    s_lshl_b32 s10, s10, 3
    s_add_u32 s11, s11, s10             ; rbk = 8*(x>>1) + (j>>2)
    s_waitcnt lgkmcnt(0)
    """)
    st.stamp()
    srd(a, 16, 8, 2048 * 9216, WS_HH)
    srd(a, 20, 8, 8 * 144 * 4608, WS_W2P)
    srd(a, 24, 6, 2048 * 1152)
    srd(a, 28, 8, 2048 * 1152, WS_H)
    a(f"""
    v_and_b32 v3, 15, v1
    v_lshrrev_b32 v4, 4, v1             ; g
    v_bfe_u32 v5, v1, 2, 2
    v_sub_u32 v5, 4, v5
    v_and_b32 v5, 3, v5
    v_xor_b32 v5, v5, v4
    v_lshlrev_b32 v5, 4, v5
    v_lshl_add_u32 v6, v3, 6, v5
    v_lshlrev_b32 v8, 4, v1             ; lane*16
    s_mul_i32 s33, s11, {4*144*1024}
    s_lshl_b32 s14, s3, 10
    s_add_u32 s33, s33, s14
    v_lshlrev_b32 v7, 3, v4
    v_add_u32 v7, v7, v3
    v_lshlrev_b32 v7, 4, v7
    v_cmp_gt_u32 vcc, 8, v3
    s_mov_b64 s[48:49], vcc
    s_mul_i32 s34, s12, {144*4096}
    s_lshl_b32 s14, s3, 12
    s_add_u32 s34, s34, s14
    s_lshl_b32 s37, s12, 3
    s_add_u32 s37, s37, s3
    s_mul_i32 s37, s37, 9216
    s_add_u32 s37, s37, {8*144*4096}    ; T4 base
    """)
    ACC = 64
    if DMA:
        SL = 8192
        a(f"""
        s_mul_i32 s46, s3, {2*SL + 2048}
        v_add_u32 v10, s46, v6
        v_add_u32 v11, s46, v8
        v_and_b32 v12, 7, v3
        v_lshl_add_u32 v12, v4, 3, v12
        v_lshlrev_b32 v12, 4, v12
        v_add_u32 v12, s46, v12
        """)
        FB = [144, 180]
        vm = Cnt(a, "vmcnt"); lg = Cnt(a, "lgkmcnt")
        def dma(i, k):
            sl = (i & 1) * SL
            if k < 4:
                a(f"s_add_u32 m0, s46, {sl + 1024*k}")
                a(f"s_add_u32 s35, s33, {(k*144 + i*8)*1024}")
                a(f"buffer_load_dwordx4 v8, s[16:19], s35 offen lds")
            elif k < 8:
                n = k - 4
                a(f"s_add_u32 m0, s46, {sl + 4096 + 1024*n}")
                a(f"s_add_u32 s35, s34, {i*8*4096 + n*1024}")
                a(f"buffer_load_dwordx4 v8, s[20:23], s35 offen lds")
            else:
                if i & 1: return
                a(f"s_add_u32 m0, s46, {2*SL + ((i>>1)&1)*1024}")
                a(f"s_add_u32 s35, s37, {(i>>1)*1024}")
                a(f"buffer_load_dwordx4 v8, s[20:23], s35 offen lds")
            vm.issue(("d", i))
        def rd(i):
            sl = (i & 1) * SL; b = FB[i & 1]
            for q in range(4):
                a(f"ds_read_b128 v[{b+4*q}:{b+4*q+3}], v10 offset:{sl + 1024*q}"); lg.issue(("r", i))
            for n in range(4):
                a(f"ds_read_b128 v[{b+16+4*n}:{b+16+4*n+3}], v11 offset:{sl + 4096 + 1024*n}"); lg.issue(("r", i))
            a(f"ds_read_b128 v[{b+32}:{b+35}], v12 offset:{2*SL + ((i>>1)&1)*1024 + (i&1)*512}"); lg.issue(("r", i))
        for i in range(2):
            for k in range(9): dma(i, k)
        for r in range(ACC, ACC + 80):
            a(f"v_mov_b32 v{r}, 0")
        vm.need(("d", 0)); rd(0)
        for i in range(NCH):
            b = FB[i & 1]
            if i in (0, 1, 6, 12): st.stamp()
            lg.need(("r", i))
            pieces = [k for k in range(9)] if i + 2 < NCH else []
            cnt = 0
            for n in range(5):
                for q in range(4):
                    c = ACC + (q * 5 + n) * 4
                    a(f"v_mfma_f32_16x16x32_bf16 v[{c}:{c+3}], v[{b+16+4*n}:{b+16+4*n+3}], v[{b+4*q}:{b+4*q+3}], v[{c}:{c+3}]")
                    if pieces and cnt < 9:
                        dma(i + 2, pieces.pop(0))
                    cnt += 1
                    if cnt == 12 and i + 1 < NCH:
                        vm.need(("d", i + 1)); rd(i + 1)
        a("s_barrier")
    else:
        gemm2_vgpr_loop(a, st, ACC)
    st.stamp()
    a("s_mov_b32 s38, 0xffff0000")
    a("s_movk_i32 s47, 72")
    for k in range(3):
        a(f"""
        s_add_u32 s39, s3, {8*k}
        s_mul_i32 s40, s39, 52
        s_lshr_b32 s40, s40, 8              ; q = T/5
        s_mul_i32 s41, s40, 5
        s_sub_u32 s41, s39, s41             ; n
        s_lshl_b32 s42, s11, 6
        s_lshl_b32 s40, s40, 4
        s_add_u32 s42, s42, s40
        v_add_u32 v7, s42, v3
        v_mul_u32_u24 v7, 1152, v7
        s_mul_i32 s42, s12, 144
        s_lshl_b32 s43, s41, 5
        s_add_u32 s42, s42, s43
        v_lshrrev_b32 v9, 4, v1
        v_lshl_add_u32 v7, v9, 3, v7
        v_add_u32 v{150+k}, s42, v7
        s_lshl_b32 s43, s41, 4
        v_lshl_add_u32 v9, v9, 2, s43
        v_cmp_gt_u32 s[{50+2*k}:{51+2*k}], 72, v9
        """.replace("v_cmp_gt_u32 s[", "v_cmp_lt_u32 s[").replace("], 72, v9", "], v9, s47"))
        if k == 0:
            pass
    s_ = ""
    a(f"""
    s_mul_i32 s46, s3, 20480
    v_lshl_add_u32 v4, v1, 4, s46
    s_cmp_ge_u32 s3, 4
    s_cselect_b64 s[54:55], 0, s[54:55]
    """)
    for k in range(3):
        a(f"s_mov_b64 exec, s[{50+2*k}:{51+2*k}]")
        if k == 2:
            a(f"s_cbranch_execz {name}_nold")
        a(f"buffer_load_dwordx2 v[{154+2*k}:{155+2*k}], v{150+k}, s[28:31], 0 offen")
    a.label(f"{name}_nold")
    a("s_mov_b64 exec, -1")
    for t in range(20):
        c = ACC + 4 * t
        a(f"ds_write_b128 v4, v[{c}:{c+3}] offset:{1024*t}")
    a("s_waitcnt lgkmcnt(0)")
    a("s_barrier")
    st.stamp()
    a(f"""
    v_lshlrev_b32 v4, 4, v0             ; tid*16
    v_add_u32 v5, {4*20480}, v4
    v_add_u32 v6, {3*20480}, v4
    v_add_u32 v7, {7*20480}, v4
    """)
    for k in range(3):
        if k == 2:
            a("s_cmp_ge_u32 s3, 4")
            a(f"s_cbranch_scc1 {name}_fin")
        R = 16 + 32 * (k & 1)
        for w in range(8):
            if (w & 3) == 3:
                base, off = ("v6" if w < 4 else "v7"), 8192 * k
            else:
                base, off = ("v4" if w < 4 else "v5"), (w & 3) * 20480 + 8192 * k
            a(f"ds_read_b128 v[{R+4*w}:{R+3+4*w}], {base} offset:{off}")
        a("s_waitcnt lgkmcnt(0)")
        for r in range(0, 4, 2):
            a(f"v_pk_add_f32 v[{R+r}:{R+r+1}], v[{R+r}:{R+r+1}], v[{R+4+r}:{R+5+r}]")
            a(f"v_pk_add_f32 v[{R+8+r}:{R+9+r}], v[{R+8+r}:{R+9+r}], v[{R+12+r}:{R+13+r}]")
            a(f"v_pk_add_f32 v[{R+16+r}:{R+17+r}], v[{R+16+r}:{R+17+r}], v[{R+20+r}:{R+21+r}]")
            a(f"v_pk_add_f32 v[{R+24+r}:{R+25+r}], v[{R+24+r}:{R+25+r}], v[{R+28+r}:{R+29+r}]")
        for r in range(0, 4, 2):
            a(f"v_pk_add_f32 v[{R+r}:{R+r+1}], v[{R+r}:{R+r+1}], v[{R+8+r}:{R+9+r}]")
            a(f"v_pk_add_f32 v[{R+16+r}:{R+17+r}], v[{R+16+r}:{R+17+r}], v[{R+24+r}:{R+25+r}]")
        for r in range(0, 4, 2):
            a(f"v_pk_add_f32 v[{R+r}:{R+r+1}], v[{R+r}:{R+r+1}], v[{R+16+r}:{R+17+r}]")
        h = 154 + 2 * k
        a(f"""
        v_cvt_pk_bf16_f32 v{R+4}, v{R}, v{R+1}
        v_cvt_pk_bf16_f32 v{R+5}, v{R+2}, v{R+3}
        v_lshlrev_b32 v{R}, 16, v{R+4}
        v_and_b32 v{R+1}, s38, v{R+4}
        v_lshlrev_b32 v{R+2}, 16, v{R+5}
        v_and_b32 v{R+3}, s38, v{R+5}
        """)
        if k == 0:
            a("s_waitcnt vmcnt(0)")
        a(f"""
        v_lshlrev_b32 v{R+4}, 16, v{h}
        v_and_b32 v{R+5}, s38, v{h}
        v_lshlrev_b32 v{R+6}, 16, v{h+1}
        v_and_b32 v{R+7}, s38, v{h+1}
        v_pk_add_f32 v[{R}:{R+1}], v[{R}:{R+1}], v[{R+4}:{R+5}]
        v_pk_add_f32 v[{R+2}:{R+3}], v[{R+2}:{R+3}], v[{R+6}:{R+7}]
        v_cvt_pk_bf16_f32 v{R+8}, v{R}, v{R+1}
        v_cvt_pk_bf16_f32 v{R+9}, v{R+2}, v{R+3}
        s_mov_b64 exec, s[{50+2*k}:{51+2*k}]
        buffer_store_dwordx2 v[{R+8}:{R+9}], v{150+k}, s[24:27], 0 offen
        s_mov_b64 exec, -1
        """)
    a.label(f"{name}_fin")
    st.stamp()
    st.dump(8, 3, 8)
    a.label(f"{name}_end")
    a("s_endpgm")
    return kernel_desc(name, 256, sgpr=102)


def w2pack_body(a, name, sblk):
    a(f"s_load_dwordx2 s[4:5], s[0:1], {ARG['w2']}")
    a(f"s_load_dwordx2 s[8:9], s[0:1], {ARG['ws']}")
    a("""
    v_lshrrev_b32 v2, 6, v0
    v_and_b32 v1, 63, v0
    s_nop 0
    v_readfirstlane_b32 s3, v2
    v_lshlrev_b32 v8, 4, v1
    s_waitcnt lgkmcnt(0)
    """)
    srd(a, 16, 4, 4608 * 1152)
    srd(a, 20, 8, 8 * 144 * 4608, WS_W2P)
    a(f"""
    s_mul_i32 s30, s3, 9216
    s_mul_i32 s31, s{sblk}, 36864
    s_add_u32 s31, s31, s30
    """)
    for i in range(9):
        a(f"s_add_u32 m0, s30, {1024*i}")
        a(f"s_add_u32 s32, s31, {1024*i}")
        a(f"buffer_load_dwordx4 v8, s[16:19], s32 offen lds")
    srd(a, 24, 8, 64 * 4 * 64, WS_FLG)
    a(f"""
    v_mov_b32 v12, 0
    v_lshlrev_b32 v13, 2, v0
    s_lshl_b32 s33, s{sblk}, 10
    buffer_store_dword v12, v13, s[24:27], s33 offen
    v_lshrrev_b32 v4, 2, v1
    v_mul_u32_u24 v9, 1152, v4
    v_and_b32 v5, 3, v1
    v_lshl_add_u32 v9, v5, 3, v9
    s_mul_i32 s33, s3, 288
    v_add_u32 v9, s33, v9
    s_mul_i32 s34, s3, {2*144*4096}
    s_lshl_b32 s35, s{sblk}, 12
    s_add_u32 s34, s34, s35
    s_lshl_b32 s36, s3, 4
    s_and_b32 s35, s{sblk}, 7
    s_add_u32 s36, s36, s35
    s_mul_i32 s36, s36, 9
    s_lshr_b32 s35, s{sblk}, 4
    s_add_u32 s36, s36, s35
    s_lshl_b32 s36, s36, 10
    s_bfe_u32 s35, s{sblk}, 0x10003
    s_lshl_b32 s35, s35, 9
    s_add_u32 s36, s36, s35
    s_add_u32 s36, s36, {8*144*4096}
    v_and_b32 v3, 15, v1
    v_cmp_gt_u32 vcc, 8, v3
    s_waitcnt vmcnt(0)
    s_barrier
    """)
    for c in range(2):
        for n in range(5):
            r = 16 + 4 * (c * 5 + n)
            o = c * 144 + n * 32
            a(f"ds_read_b64_tr_b16 v[{r}:{r+1}], v9 offset:{o}")
            a(f"ds_read_b64_tr_b16 v[{r+2}:{r+3}], v9 offset:{o + 16*1152}")
    a("s_waitcnt lgkmcnt(0)")
    a("""
    v_lshrrev_b32 v4, 4, v1
    v_lshl_add_u32 v7, v4, 3, v3
    v_lshlrev_b32 v7, 4, v7
    """)
    for c in range(2):
        for n in range(5):
            r = 16 + 4 * (c * 5 + n)
            a(f"s_add_u32 s35, s34, {c*144*4096}" if n < 4 else f"s_add_u32 s35, s36, {c*8*9216}")
            if n == 4:
                a("s_mov_b64 exec, vcc")
                a(f"buffer_store_dwordx4 v[{r}:{r+3}], v7, s[20:23], s35 offen")
                a("s_mov_b64 exec, -1")
            else:
                a(f"buffer_store_dwordx4 v[{r}:{r+3}], v8, s[20:23], s35 offen offset:{(n%4)*1024}")


def gemm2_vgpr_loop(a, st, ACC):
    FB = [144, 180, 216]
    vm = Cnt(a, "vmcnt")
    def ldx(i, q):
        r = FB[i % DEPTH] + 4 * q
        a(f"s_add_u32 s35, s33, {(q*144 + i*8)*1024}")
        a(f"buffer_load_dwordx4 v[{r}:{r+3}], v6, s[16:19], s35 offen")
        vm.issue(("x", i, q))
    def ldw(i, n):
        r = FB[i % DEPTH] + 16 + 4 * n
        a(f"s_add_u32 s36, s34, {i*8*4608 + (n//4)*4096}")
        if n == 4:
            a("s_mov_b64 exec, s[48:49]")
            a(f"buffer_load_dwordx4 v[{r}:{r+3}], v7, s[20:23], s36 offen")
            a("s_mov_b64 exec, -1")
        else:
            a(f"buffer_load_dwordx4 v[{r}:{r+3}], v8, s[20:23], s36 offen offset:{(n%4)*1024}")
        vm.issue(("w", i, n))
    for fb in FB:
        for k in range(4):
            a(f"v_mov_b32 v{fb+32+k}, 0")
    for i in range(DEPTH):
        for q in range(4): ldx(i, q)
        for n in range(5): ldw(i, n)
    for r in range(ACC, ACC + 80):
        a(f"v_mov_b32 v{r}, 0")
    for i in range(NCH):
        b = FB[i % DEPTH]
        if i in (0, 1, 6, 12): st.stamp()
        for n in range(5):
            for q in range(4):
                vm.need(("x", i, q), ("w", i, n))
                c = ACC + (q * 5 + n) * 4
                a(f"v_mfma_f32_16x16x32_bf16 v[{c}:{c+3}], v[{b+16+4*n}:{b+16+4*n+3}], v[{b+4*q}:{b+4*q+3}], v[{c}:{c+3}]")
                if n == 4 and i + DEPTH < NCH:
                    ldx(i + DEPTH, q)
            if i + DEPTH < NCH:
                ldw(i + DEPTH, n)
```

```python
from gen_common import *
import re
from gen_gemm2 import w2pack_body

NW = 6
NM = 3
LN2_LDS = NW * 1536 + 1024
LN2_GRID = 256
LN2_BLOCK = NW * 64

def ln2_kernel(a, name, prof=False):
    st = Stamps(a, prof, kid=4, vr=94)
    kernel_header(a, name)
    a(f"s_cmp_ge_u32 s2, {LN2_GRID}")
    a(f"s_cbranch_scc1 {name}_end")
    a("s_cmp_ge_u32 s2, 256")
    a(f"s_cbranch_scc0 {name}_main")
    a("v_lshrrev_b32 v1, 8, v0")
    a("s_nop 0")
    a("v_readfirstlane_b32 s3, v1")
    a("s_cmp_lg_u32 s3, 0")
    a(f"s_cbranch_scc1 {name}_end")
    a("s_sub_u32 s2, s2, 256")
    w2pack_body(a, name + "_wp0", 2)
    a(f"s_branch {name}_end")
    a.label(f"{name}_main")
    st.stamp()
    a("""
    s_and_b32 s3, s2, 7
    s_lshr_b32 s2, s2, 3
    s_lshl_b32 s3, s3, 5
    s_add_u32 s2, s2, s3
    """)
    ln2_body(a, st)
    st.stamp()
    if prof: a("s_waitcnt vmcnt(0)")
    st.stamp()
    st.dump(6, 3, 6)
    a.label(f"{name}_end")
    a("s_endpgm")
    return kernel_desc(name, 96, sgpr=102)


def ln2_body(a, st, lds_base=0, wt=''):
    a(f"s_load_dwordx2 s[4:5], s[0:1], {ARG['x']}")
    a(f"s_load_dwordx2 s[6:7], s[0:1], {ARG['ws']}")
    a(f"s_load_dwordx2 s[40:41], s[0:1], {ARG['Dskip']}")
    a("""
    v_lshrrev_b32 v1, 6, v0
    v_and_b32 v2, 63, v0                ; lane
    s_nop 0
    v_readfirstlane_b32 s3, v1          ; wave
    v_and_b32 v3, 7, v2                 ; t
    v_lshrrev_b32 v4, 3, v2             ; cg
    s_waitcnt lgkmcnt(0)
    """)
    st.stamp()
    srd(a, 8, 4, 2048 * 1152)
    srd(a, 12, 6, 2048 * 8, WS_STATS1)
    srd(a, 16, 6, 576 * TS, WS_YT)
    srd(a, 20, 6, 2048 * 1152, WS_H)
    srd(a, 24, 6, 2048 * 1152, WS_HN)
    srd(a, 28, 40, 1152)
    X, Y, D = 16, 24, 32
    a(f"""
    s_mul_i32 s32, s3, 1536
    s_add_u32 s32, s32, {lds_base}
    s_mul_i32 s33, s3, {96*TS}
    s_lshl_b32 s34, s2, 4               ; t0*2
    s_add_u32 s33, s33, s34
    v_and_b32 v5, 0x38, v2              ; 8G
    v_and_b32 v6, 1, v2
    v_lshl_add_u32 v5, v6, 2, v5
    v_bfe_u32 v6, v2, 1, 2
    v_add_u32 v5, v5, v6
    v_mul_u32_u24 v5, {TS}, v5
    """)
    for i in range(2):
        if i == 1:
            a("s_mov_b64 exec, 0xffffffff")
        a(f"s_add_u32 m0, s32, {1024*i}")
        a(f"s_add_u32 s35, s33, {64*TS*i}")
        a(f"buffer_load_dwordx4 v5, s[16:19], s35 offen lds")
    a("s_mov_b64 exec, -1")
    a(f"""
    s_lshl_b32 s34, s2, 3
    v_add_u32 v6, s34, v3               ; row
    v_mul_u32_u24 v7, 1152, v6
    s_mul_i32 s35, s3, 192
    v_lshl_add_u32 v8, v4, 3, s35       ; (96w + 4cg)*2
    v_add_u32 v7, v7, v8
    v_lshlrev_b32 v9, 3, v6
    buffer_load_dwordx2 v[10:11], v9, s[12:15], 0 offen
    """)
    for m in range(NM):
        a(f"buffer_load_dwordx2 v[{X+2*m}:{X+2*m+1}], v7, s[8:11], 0 offen offset:{64*m}")
    for m in range(NM):
        a(f"buffer_load_dwordx2 v[{D+2*m}:{D+2*m+1}], v8, s[28:31], 0 offen offset:{64*m}")
    a(f"""
    v_lshlrev_b32 v12, 3, v2
    v_add_u32 v12, s32, v12
    s_mov_b32 s36, 0xffff0000
    s_mov_b32 s37, {f32hex(1.0/576)}
    s_mov_b32 s38, {f32hex(576.0)}
    s_mov_b32 s39, {f32hex(1e-5)}
    v_lshlrev_b32 v15, 5, v3            ; t*32
    v_lshl_add_u32 v14, v1, 2, v15      ; t*32 + w*4
    s_waitcnt vmcnt({1+2*NM})
    """)
    st.stamp()
    for m in range(NM):
        a(f"ds_read_b64_tr_b16 v[{Y+2*m}:{Y+2*m+1}], v12 offset:{512*m}")
    a(f"s_waitcnt vmcnt({2*NM})")
    a("v_rcp_f32 v13, v11")
    H = 48
    a("s_waitcnt vmcnt(0) lgkmcnt(0)")
    st.stamp()
    for dw in range(2 * NM):
        x, y, d = X + dw, Y + dw, D + dw
        h0 = H + 2 * dw
        T = 84 + 6 * (dw & 1)
        a(f"""
        v_lshlrev_b32 v{h0}, 16, v{x}
        v_and_b32 v{h0+1}, s36, v{x}
        v_pk_add_f32 v[{T}:{T+1}], v[{h0}:{h0+1}], v[10:11] op_sel_hi:[1,0] neg_lo:[0,1] neg_hi:[0,1]
        v_cvt_pk_bf16_f32 v{T+2}, v{T}, v{T+1}
        v_lshlrev_b32 v{T}, 16, v{T+2}
        v_and_b32 v{T+1}, s36, v{T+2}
        v_pk_mul_f32 v[{T+2}:{T+3}], v[{T}:{T+1}], v[12:13] op_sel:[0,1] op_sel_hi:[1,1]
        v_pk_fma_f32 v[{T+4}:{T+5}], v[{T+2}:{T+3}], v[10:11], v[{T}:{T+1}] op_sel:[0,1,0] op_sel_hi:[1,1,1] neg_lo:[1,0,0] neg_hi:[1,0,0]
        v_pk_fma_f32 v[{T+2}:{T+3}], v[{T+4}:{T+5}], v[12:13], v[{T+2}:{T+3}] op_sel:[0,1,0] op_sel_hi:[1,1,1]
        v_cvt_pk_bf16_f32 v{T+2}, v{T+2}, v{T+3}
        v_lshlrev_b32 v{T}, 16, v{T+2}
        v_and_b32 v{T+1}, s36, v{T+2}
        v_lshlrev_b32 v{T+2}, 16, v{d}
        v_and_b32 v{T+3}, s36, v{d}
        v_pk_mul_f32 v[{T}:{T+1}], v[{T}:{T+1}], v[{T+2}:{T+3}]
        v_cvt_pk_bf16_f32 v{T+2}, v{T}, v{T+1}
        v_lshlrev_b32 v{T}, 16, v{T+2}
        v_and_b32 v{T+1}, s36, v{T+2}
        v_lshlrev_b32 v{T+2}, 16, v{y}
        v_and_b32 v{T+3}, s36, v{y}
        v_pk_add_f32 v[{T}:{T+1}], v[{T}:{T+1}], v[{T+2}:{T+3}]
        v_cvt_pk_bf16_f32 v{T+2}, v{T}, v{T+1}
        v_lshlrev_b32 v{T}, 16, v{T+2}
        v_and_b32 v{T+1}, s36, v{T+2}
        v_pk_add_f32 v[{T}:{T+1}], v[{T}:{T+1}], v[{h0}:{h0+1}]
        v_cvt_pk_bf16_f32 v{x}, v{T}, v{T+1}
        v_lshlrev_b32 v{h0}, 16, v{x}
        v_and_b32 v{h0+1}, s36, v{x}
        """)
        if dw == 0:
            a(f"v_pk_mul_f32 v[42:43], v[{h0}:{h0+1}], v[{h0}:{h0+1}]")
            a(f"v_mov_b32 v40, v{h0}")
            a(f"v_mov_b32 v41, v{h0+1}")
        else:
            a(f"v_pk_add_f32 v[40:41], v[40:41], v[{h0}:{h0+1}]")
            a(f"v_pk_fma_f32 v[42:43], v[{h0}:{h0+1}], v[{h0}:{h0+1}], v[42:43]")
        if dw % 2 == 1:
            m = dw // 2
            a(f"buffer_store_dwordx2 v[{X+2*m}:{X+2*m+1}], v7, s[20:23], 0 offen offset:{64*m}")
    st.stamp()
    RED = NW * 1536
    a(f"""
    v_add_f32 v84, v40, v41
    v_add_f32 v85, v42, v43
    v_lshlrev_b32 v15, 6, v3
    v_add_u32 v15, {lds_base + RED}, v15
    v_lshl_add_u32 v14, v1, 3, v15
    v_add_f32_dpp v86, v84, v84 row_ror:8 row_mask:0xf bank_mask:0xf
    v_add_f32_dpp v87, v85, v85 row_ror:8 row_mask:0xf bank_mask:0xf
    v_mov_b32 v84, v86
    v_mov_b32 v85, v87
    s_nop 0
    v_permlane32_swap_b32 v84, v86
    v_permlane32_swap_b32 v85, v87
    s_nop 0
    v_pk_add_f32 v[84:85], v[84:85], v[86:87]
    s_nop 0
    v_mov_b32 v86, v84
    v_mov_b32 v87, v85
    s_nop 0
    v_permlane16_swap_b32 v84, v86
    v_permlane16_swap_b32 v85, v87
    s_nop 0
    v_pk_add_f32 v[84:85], v[84:85], v[86:87]
    ds_write_b64 v14, v[84:85]
    s_waitcnt lgkmcnt(0)
    s_barrier
    ds_read_b128 v[84:87], v15
    ds_read_b128 v[88:91], v15 offset:16
    ds_read_b128 v[92:95], v15 offset:32
    s_waitcnt lgkmcnt(0)
    v_pk_add_f32 v[84:85], v[84:85], v[86:87]
    v_pk_add_f32 v[88:89], v[88:89], v[90:91]
    v_pk_add_f32 v[92:93], v[92:93], v[94:95]
    v_pk_add_f32 v[84:85], v[84:85], v[88:89]
    v_pk_add_f32 v[84:85], v[84:85], v[92:93]   ; (S1, S2)
    v_mul_f32 v86, s37, v84
    v_fma_f32 v87, -v86, s38, v84
    v_fma_f32 v90, v87, s37, v86        ; mean
    v_mul_f32 v86, s37, v85
    v_fma_f32 v87, -v86, s38, v85
    v_fma_f32 v86, v87, s37, v86        ; E[h^2]
    v_fma_f32 v91, -v90, v90, v86       ; var
    v_max_f32 v91, 0, v91
    """)
    st.stamp()
    a(f"""
    v_cvt_pk_bf16_f32 v84, v90, v91
    v_lshlrev_b32 v90, 16, v84          ; m_b
    v_and_b32 v91, s36, v84
    v_add_f32 v91, s39, v91
    v_cvt_pk_bf16_f32 v84, v91, v91
    v_lshlrev_b32 v91, 16, v84
    v_sqrt_f32 v91, v91
    s_nop 0
    v_cvt_pk_bf16_f32 v84, v91, v91
    v_lshlrev_b32 v91, 16, v84          ; s
    v_rcp_f32 v92, v91
    v_and_b32 v85, 15, v6               ; r
    v_lshrrev_b32 v84, 2, v85
    v_sub_u32 v84, 4, v84
    v_and_b32 v84, 3, v84
    v_and_b32 v86, 3, v4
    v_xor_b32 v84, v84, v86
    v_lshlrev_b32 v84, 4, v84
    v_lshl_add_u32 v94, v85, 6, v84
    v_lshrrev_b32 v86, 2, v4
    v_lshl_add_u32 v94, v86, 3, v94
    s_lshr_b32 s42, s2, 1
    s_mul_i32 s42, s42, 18432
    s_mul_i32 s43, s3, 3072
    s_add_u32 s42, s42, s43
    """)
    for m in range(NM):
        for k in range(2):
            dw = 2 * m + k
            h0 = H + 2 * dw
            T = 40 + 4 * k
            a(f"""
            v_pk_add_f32 v[{h0}:{h0+1}], v[{h0}:{h0+1}], v[90:91] op_sel_hi:[1,0] neg_lo:[0,1] neg_hi:[0,1]
            v_cvt_pk_bf16_f32 v{T}, v{h0}, v{h0+1}
            v_lshlrev_b32 v{h0}, 16, v{T}
            v_and_b32 v{h0+1}, s36, v{T}
            v_pk_mul_f32 v[{T}:{T+1}], v[{h0}:{h0+1}], v[92:93] op_sel_hi:[1,0]
            v_pk_fma_f32 v[{T+2}:{T+3}], v[{T}:{T+1}], v[90:91], v[{h0}:{h0+1}] op_sel:[0,1,0] op_sel_hi:[1,1,1] neg_lo:[1,0,0] neg_hi:[1,0,0]
            v_pk_fma_f32 v[{T}:{T+1}], v[{T+2}:{T+3}], v[92:93], v[{T}:{T+1}] op_sel_hi:[1,0,1]
            v_cvt_pk_bf16_f32 v{Y+dw}, v{T}, v{T+1}
            """)
        a(f"buffer_store_dwordx2 v[{Y+2*m}:{Y+2*m+1}], v94, s[24:27], s42 offen offset:{1024*m}" + wt)


def ln2_embedded(a, lds_base, voff=100, soff=52, wt=" sc1"):
    t = Asm()
    ln2_body(t, Stamps(t, False), lds_base, wt)
    def rv(m):
        n = int(m.group(1)); return f"v{n + voff}" if n >= 1 else "v0"
    def rvr(m):
        return f"v[{int(m.group(1)) + voff}:{int(m.group(2)) + voff}]"
    def rs(m):
        n = int(m.group(1)); return f"s{n + soff}" if n >= 2 else f"s{n}"
    def rsr(m):
        x, y = int(m.group(1)), int(m.group(2))
        return f"s[{x + soff}:{y + soff}]" if x >= 2 else m.group(0)
    for ln in t.lines:
        code, _, com = ln.partition(";")
        code = re.sub(r"\bv\[(\d+):(\d+)\]", rvr, code)
        code = re.sub(r"\bv(\d+)\b", rv, code)
        code = re.sub(r"\bs\[(\d+):(\d+)\]", rsr, code)
        code = re.sub(r"\bs(\d+)\b", rs, code)
        a.lines.append(code.rstrip())
```

```python
from gen_common import *
import math
from gen_ln2 import ln2_embedded

G1_SLOT = 16384 + 2 * 9216
G1_LDS = 4 * G1_SLOT
NST = 18
import os
STMOD = os.environ.get('G1ST', '')
DRY = int(os.environ.get('G1DRY', '0'))
FINE = int(os.environ.get('G1FINE', '0'))
PRIO = int(os.environ.get('G1PRIO', '0'))
DEARLY = int(os.environ.get('G1DE', '1'))
ASC1 = int(os.environ.get('G1ASC1', '1'))
FUSE = int(os.environ.get('G1FUSE', '1'))

def gemm1_kernel(a, name, exact_round=False, prof=False):
    kernel_header(a, name)
    a("s_cmp_ge_u32 s2, 256")
    a(f"s_cbranch_scc1 {name}_end")
    a(f"s_load_dwordx4 s[4:7], s[0:1], {ARG['w1']}")
    a(f"s_load_dwordx2 s[8:9], s[0:1], {ARG['ws']}")
    a("""
    v_lshrrev_b32 v2, 6, v0
    v_and_b32 v1, 63, v0                ; lane
    s_nop 0
    v_readfirstlane_b32 s3, v2          ; wave
    s_and_b32 s10, s2, 7
    s_lshr_b32 s11, s2, 3
    s_and_b32 s12, s11, 3
    s_lshl_b32 s10, s10, 2
    s_add_u32 s10, s10, s12             ; cb
    s_lshr_b32 s11, s11, 2              ; rb
    s_and_b32 s13, s3, 3                ; wm
    s_waitcnt lgkmcnt(0)
    """)
    srd(a, 16, 8, 2048 * 1152, WS_HN)
    srd(a, 24, 8, 2048 * 9216, WS_HH)
    a("""
    s_cmp_ge_u32 s3, 6
    s_cselect_b32 s20, s6, s4
    s_cselect_b32 s21, s7, s5
    s_and_b32 s21, s21, 0xffff
    """)
    a(f"s_mov_b32 s22, {576*9216}")
    a("s_mov_b32 s23, 0x00020000")
    a(f"""
    v_and_b32 v3, 15, v1                ; l&15
    v_lshrrev_b32 v4, 4, v1             ; g
    v_bfe_u32 v5, v1, 2, 2
    v_sub_u32 v5, 4, v5
    v_and_b32 v5, 3, v5
    v_xor_b32 v5, v5, v4
    v_lshlrev_b32 v5, 4, v5
    v_lshl_add_u32 v2, v3, 6, v5
    s_lshl_b32 s14, s13, 12
    v_add_u32 v6, s14, v2               ; vXa0
    v_add_u32 v7, {2*G1_SLOT}, v6       ; vXa1
    v_lshrrev_b32 v4, 2, v1
    v_mul_u32_u24 v8, 288, v4
    v_and_b32 v5, 3, v1
    v_lshl_add_u32 v8, v5, 3, v8
    s_and_b32 s44, s10, 1
    s_xor_b32 s45, s44, 1
    s_lshl_b32 s45, s45, 8
    v_add_u32 v252, s45, v8             ; vW4a0
    v_add_u32 v253, {2*G1_SLOT}, v252   ; vW4a1
    s_lshl_b32 s45, s44, 5
    s_lshr_b32 s46, s3, 2
    s_lshl_b32 s46, s46, 7
    s_add_u32 s45, s45, s46
    v_add_u32 v8, s45, v8
    v_add_u32 v9, {2*G1_SLOT}, v8       ; vWa1
    """)
    a("s_cmp_ge_u32 s3, 4")
    a(f"s_cbranch_scc1 {name}_p1")
    gemm1_path(a, name, 0, exact_round, prof)
    a(f"s_branch {name}_end")
    a.label(f"{name}_p1")
    gemm1_path(a, name, 1, exact_round, prof)
    a.label(f"{name}_end")
    a("s_endpgm")
    return kernel_desc(name, 256, sgpr=102)

def gemm1_path(a, name, wn, exact_round, prof):
    st = Stamps(a, prof, kid=1)
    NT = 5 if wn == 0 else 4
    T0 = 0 if wn == 0 else 5
    VX = [16, 32]
    VW = 48
    ACC = 88
    nd = 4 if wn == 0 else 5
    lg = Cnt(a, "lgkmcnt"); vm = Cnt(a, "vmcnt")
    def acc(i, j, mat):
        return ACC + ((i * NT + j) * 2 + mat) * 4
    if prof and FUSE:
        a("s_memrealtime s[98:99]")
        a("s_memtime s[100:101]")
    else:
        st.stamp()
    if wn == 0:
        a(f"""
        v_lshlrev_b32 v10, 4, v1
        s_lshl_b32 s14, s11, 4
        s_lshl_b32 s15, s13, 2
        s_add_u32 s14, s14, s15
        s_mul_i32 s31, s14, {18*1024}
        s_lshl_b32 s30, s13, 12
        """)
    else:
        a(f"""
        s_and_b32 s14, s3, 1                ; hv
        s_mul_i32 s15, s14, {16*9216}
        s_mul_i32 s31, s10, 288
        s_add_u32 s15, s15, s31
        s_mov_b32 s32, {(1<<32)//18 + 1}
        s_lshr_b32 s33, s13, 1              ; matrix
        s_mul_i32 s30, s33, 9216
        s_mul_i32 s33, s14, 4608
        s_add_u32 s30, s30, s33
        s_add_u32 s30, s30, 16384
        """)
        for i in range(5):
            a(f"""
            v_add_u32 v4, {64*i}, v1
            v_mul_hi_u32 v5, v4, s32            ; row
            v_mul_u32_u24 v15, 18, v5
            v_sub_u32 v4, v4, v15               ; c
            v_mul_u32_u24 v5, 9216, v5
            v_lshl_add_u32 v{10+i}, v4, 4, v5
            v_add_u32 v{10+i}, s15, v{10+i}
            """)
    def dma_piece(s, i):
        slot = s & 3
        if wn == 0:
            a(f"s_add_u32 m0, s30, {slot*G1_SLOT + 1024*i}")
            a(f"s_add_u32 s34, s31, {(i*18 + s)*1024}")
            a(f"buffer_load_dwordx4 v10, s[16:19], s34 offen" + (" sc1" if (FUSE and ASC1) else "") + " lds")
        else:
            a(f"s_add_u32 m0, s30, {slot*G1_SLOT + 1024*i}")
            a(f"s_mov_b32 s34, {s*32*9216}")
            if i == 4:
                a("s_mov_b64 exec, 0xffffffff")
            a(f"buffer_load_dwordx4 v{10+i}, s[20:23], s34 offen lds")
            if i == 4:
                a("s_mov_b64 exec, -1")
        vm.issue(("d", s))
    def xread(s, i):
        slot = s & 3
        base = "v6" if slot < 2 else "v7"
        off = (slot & 1) * G1_SLOT
        b = VX[s & 1]
        a(f"ds_read_b128 v[{b+4*i}:{b+4*i+3}], {base} offset:{off + 1024*i}")
        lg.issue(("x", s, i))
    def wread(s, j, mat, h):
        slot = s & 3
        base = "v8" if slot < 2 else "v9"
        if j == 4:
            base = "v252" if slot < 2 else "v253"
        off = (slot & 1) * G1_SLOT + 16384
        r = VW + (j * 2 + mat) * 4 + 2 * h
        o = off + mat * 9216 + (j & 3) * 32 + h * 16 * 288
        a(f"ds_read_b64_tr_b16 v[{r}:{r+1}], {base} offset:{o}")
        lg.issue(("w", s, j, mat, h))
    def fused_ln2():
        a("s_lshl_b32 s54, s11, 5")
        a("s_add_u32 s54, s54, s10")
        if wn == 1:
            a("s_cmp_ge_u32 s3, 6")
            a(f"s_cbranch_scc1 {name}_lnskip")
        ln2_embedded(a, 3 * G1_SLOT)
        if wn == 1:
            a(f"s_branch {name}_lndone")
            a.label(f"{name}_lnskip")
            a("s_barrier")
            a.label(f"{name}_lndone")
        if prof: a("s_memtime s[60:61]")
        a("s_waitcnt vmcnt(0) lgkmcnt(0)")
        if prof: a("s_memtime s[62:63]")
        vm.done = vm.issued
        a("s_barrier")
        if wn == 1:
            for s_ in range(3):
                for i in range(nd):
                    dma_piece(s_, i)
        if prof: a("s_memtime s[64:65]")
        if wn == 0:
            a("s_cmp_lg_u32 s3, 0")
            a(f"s_cbranch_scc1 {name}_go")
            srd(a, 48, 8, 64 * 4 * 64, WS_FLG)
            a(f"""
            s_lshl_b32 s52, s11, 7              ; rb*128
            s_lshl_b32 s53, s10, 2
            s_add_u32 s53, s53, s52
            v_mov_b32 v100, 0
            v_mov_b32 v101, 1
            v_lshlrev_b32 v103, 2, v1
            s_mov_b64 exec, 1
            buffer_store_dword v101, v100, s[48:51], s53 offen sc1
            s_mov_b64 exec, 0xffffffff
            s_mov_b32 s53, 0
            """)
            a.label(f"{name}_poll")
            a(f"""
            buffer_load_dword v102, v103, s[48:51], s52 offen sc1
            s_waitcnt vmcnt(0)
            v_cmp_ne_u32 vcc, 0, v102
            s_add_u32 s53, s53, 1
            s_cmp_ge_u32 s53, 0x40000
            s_cbranch_scc1 {name}_go
            s_cmp_eq_u32 vcc_lo, -1
            s_cbranch_scc1 {name}_go
            s_sleep 1
            s_branch {name}_poll
            """)
            a.label(f"{name}_go")
            a("s_mov_b64 exec, -1")
        a("s_barrier")
        if prof:
            a("s_memtime s[66:67]")
            st.n = 4
    if FUSE:
        fused_ln2()
    if not (FUSE and wn == 1):
        for s in range(3):
            for i in range(nd):
                dma_piece(s, i)
    for r in range(ACC, ACC + 32 * NT):
        a(f"v_mov_b32 v{r}, 0")
    if DRY:
        a("s_mov_b32 s47, 1")
        a("s_mov_b64 exec, 0")
        a(f"s_branch {name}_epi{wn}")
        a.label(f"{name}_back{wn}")
        a("s_mov_b64 exec, -1")
        a("s_mov_b32 s47, 0")
    if PRIO and wn == 1:
        a("s_setprio 1")
    vm.need(("d", 0))
    a("s_barrier")
    st.stamp()
    for i in range(4):
        xread(0, i)
    for j in range(NT):
        for mat in range(2):
            for h in range(2):
                wread(0, j, mat, h)
    for s in range(NST):
        nxt = s + 1 < NST
        if FINE and s in (7, 8): st.stamp()
        if nxt:
            vm.need(("d", s + 1))
            if FINE and s in (7, 8): st.stamp()
            a("s_barrier")
        if FINE:
            if s in (7, 8): st.stamp()
        elif s in (1, 5, 9, 13, 17):
            st.stamp()
        b = VX[s & 1]
        fill = []
        early = []
        if nxt:
            fill += [("x", i) for i in range(4)]
        if s + 3 < NST:
            dm = [("d", i) for i in range(nd)]
            if DEARLY:
                early = dm
            else:
                f2 = []
                while fill or dm:
                    if fill: f2.append(fill.pop(0))
                    if dm: f2.append(dm.pop(0))
                fill = f2
        pend = []
        groups = [(j, mat) for j in range(NT) for mat in range(2)]
        for gi, (j, mat) in enumerate(groups):
            w = VW + (j * 2 + mat) * 4
            for i in range(4):
                lg.need(("w", s, j, mat, 0), ("w", s, j, mat, 1), ("x", s, i))
                c = acc(i, j, mat)
                a(f"v_mfma_f32_16x16x32_bf16 v[{c}:{c+3}], v[{w}:{w+3}], v[{b+4*i}:{b+4*i+3}], v[{c}:{c+3}]")
                if early:
                    k, idx = early.pop(0)
                    dma_piece(s + 3, idx)
                elif pend:
                    wread(*pend.pop(0))
                elif fill:
                    k, idx = fill.pop(0)
                    if k == "x": xread(s + 1, idx)
                    else: dma_piece(s + 3, idx)
            if nxt:
                pend += [(s + 1, j, mat, 0), (s + 1, j, mat, 1)]
        while pend:
            wread(*pend.pop(0))
        while fill:
            k, idx = fill.pop(0)
            if k == "x": xread(s + 1, idx)
            else: dma_piece(s + 3, idx)
    st.stamp()
    a.label(f"{name}_epi{wn}")
    a(f"""
    s_lshl_b32 s14, s11, 4
    s_lshl_b32 s15, s13, 2
    s_add_u32 s14, s14, s15
    s_mul_i32 s35, s14, {144*1024}
    s_mul_i32 s36, s10, 9
    s_add_u32 s39, s36, s44
    s_add_u32 s39, s39, {4*wn}
    s_lshl_b32 s39, s39, 9
    s_add_u32 s39, s39, s35
    s_xor_b32 s40, s44, 1
    s_lshl_b32 s40, s40, 3
    s_add_u32 s40, s40, s36
    s_lshr_b32 s40, s40, 1
    s_lshl_b32 s40, s40, 10
    s_lshl_b32 s41, s44, 3
    s_add_u32 s40, s40, s41
    s_add_u32 s40, s40, s35
    s_mov_b32 s42, {f32hex(-math.log2(math.e))}
    s_mov_b32 s43, {f32hex(-math.log2(math.e))}
    s_nop 7
    """)
    def silu_multi(items):
        G = [(acc(i, j, 0), acc(i, j, 1), T, D) for (i, j, T, D) in items]
        for g, u, T, D in G:
            a(f"v_pk_mul_f32 v[{T}:{T+1}], v[{g}:{g+1}], s[42:43]")
            a(f"v_pk_mul_f32 v[{T+2}:{T+3}], v[{g+2}:{g+3}], s[42:43]")
        for g, u, T, D in G:
            for r in range(4): a(f"v_exp_f32 v{T+r}, v{T+r}")
        for g, u, T, D in G:
            a(f"v_pk_mul_f32 v[{g}:{g+1}], v[{g}:{g+1}], v[{u}:{u+1}]")
            a(f"v_pk_mul_f32 v[{g+2}:{g+3}], v[{g+2}:{g+3}], v[{u+2}:{u+3}]")
        for g, u, T, D in G:
            a(f"v_pk_add_f32 v[{T}:{T+1}], v[{T}:{T+1}], 1.0 op_sel_hi:[1,0]")
            a(f"v_pk_add_f32 v[{T+2}:{T+3}], v[{T+2}:{T+3}], 1.0 op_sel_hi:[1,0]")
        for g, u, T, D in G:
            for r in range(4): a(f"v_rcp_f32 v{T+r}, v{T+r}")
        a("s_nop 0")
        for g, u, T, D in G:
            a(f"v_pk_mul_f32 v[{T}:{T+1}], v[{g}:{g+1}], v[{T}:{T+1}]")
            a(f"v_pk_mul_f32 v[{T+2}:{T+3}], v[{g+2}:{g+3}], v[{T+2}:{T+3}]")
        for g, u, T, D in G:
            a(f"v_cvt_pk_bf16_f32 v{D}, v{T}, v{T+1}")
            a(f"v_cvt_pk_bf16_f32 v{D+1}, v{T+2}, v{T+3}")
    k = 0
    for p in range(2):
        for i in range(4):
            T = 16 + 16 * (k & 3); k += 1
            silu_multi([(i, 2 * p, T, T + 8), (i, 2 * p + 1, T + 4, T + 10)])
            a(f"s_add_u32 s41, s39, {i*144*1024 + p*1024}")
            a(f"buffer_store_dwordx4 v[{T+8}:{T+11}], v2, s[24:27], s41 offen")
    if wn == 0:
        for i2 in range(2):
            T = 16 + 16 * (k & 3); k += 1
            silu_multi([(2 * i2, 4, T, T + 8), (2 * i2 + 1, 4, T + 4, T + 10)])
            for q in range(2):
                a(f"s_add_u32 s41, s40, {(2*i2+q)*144*1024}")
                a(f"buffer_store_dwordx2 v[{T+8+2*q}:{T+9+2*q}], v2, s[24:27], s41 offen")
    if DRY:
        a("s_cmp_eq_u32 s47, 1")
        a(f"s_cbranch_scc1 {name}_back{wn}")
    st.stamp()
    if prof:
        a("s_waitcnt vmcnt(0)")
    st.stamp()
    if prof and FUSE:
        a("s_waitcnt lgkmcnt(0)")
        a(f"s_mov_b32 s{st.base + 2*st.n}, s100")
        st.n += 1
    st.dump(8, 3, 8)
```

```python
from gen_common import *

G2_LDS = 163840
NCH = 18
import os
DEPTH = int(os.environ.get('G2DEPTH', '3'))
DMA = int(os.environ.get('G2DMA', '1'))
BARK = int(os.environ.get('G2BAR', '2'))

def gemm2_kernel(a, name, prof=False):
    st = Stamps(a, prof, kid=2)
    kernel_header(a, name)
    a("s_cmp_ge_u32 s2, 256")
    a(f"s_cbranch_scc1 {name}_end")
    a(f"s_load_dwordx2 s[6:7], s[0:1], {ARG['out']}")
    a(f"s_load_dwordx2 s[8:9], s[0:1], {ARG['ws']}")
    a("""
    v_lshrrev_b32 v2, 6, v0
    v_and_b32 v1, 63, v0                ; lane
    s_nop 0
    v_readfirstlane_b32 s3, v2          ; wave
    s_and_b32 s10, s2, 7                ; xcd
    s_lshr_b32 s11, s2, 3               ; j
    s_and_b32 s12, s11, 3
    s_and_b32 s13, s10, 1
    s_lshl_b32 s13, s13, 2
    s_add_u32 s12, s12, s13             ; cbk = 4*(x&1) + (j&3)
    s_lshr_b32 s11, s11, 2
    s_lshr_b32 s10, s10, 1
    s_lshl_b32 s10, s10, 3
    s_add_u32 s11, s11, s10             ; rbk = 8*(x>>1) + (j>>2)
    s_waitcnt lgkmcnt(0)
    """)
    st.stamp()
    srd(a, 16, 8, 2048 * 9216, WS_HH)
    srd(a, 20, 8, 8 * 144 * 4608, WS_W2P)
    srd(a, 24, 6, 2048 * 1152)
    srd(a, 28, 8, 2048 * 1152, WS_H)
    a(f"""
    v_and_b32 v3, 15, v1
    v_lshrrev_b32 v4, 4, v1             ; g
    v_bfe_u32 v5, v1, 2, 2
    v_sub_u32 v5, 4, v5
    v_and_b32 v5, 3, v5
    v_xor_b32 v5, v5, v4
    v_lshlrev_b32 v5, 4, v5
    v_lshl_add_u32 v6, v3, 6, v5
    v_lshlrev_b32 v8, 4, v1             ; lane*16
    s_mul_i32 s33, s11, {4*144*1024}
    s_lshl_b32 s14, s3, 10
    s_add_u32 s33, s33, s14
    v_lshlrev_b32 v7, 3, v4
    v_add_u32 v7, v7, v3
    v_lshlrev_b32 v7, 4, v7
    v_cmp_gt_u32 vcc, 8, v3
    s_mov_b64 s[48:49], vcc
    s_mul_i32 s34, s12, {144*4096}
    s_lshl_b32 s14, s3, 12
    s_add_u32 s34, s34, s14
    s_lshl_b32 s37, s12, 3
    s_add_u32 s37, s37, s3
    s_mul_i32 s37, s37, 9216
    s_add_u32 s37, s37, {8*144*4096}    ; T4 base
    """)
    ACC = 64
    if DMA:
        SL = 8192
        a(f"""
        s_mul_i32 s46, s3, 20480
        v_add_u32 v10, s46, v6
        v_add_u32 v11, s46, v8
        v_and_b32 v12, 7, v3
        v_lshl_add_u32 v12, v4, 3, v12
        v_lshlrev_b32 v12, 4, v12
        v_add_u32 v12, s46, v12
        """)
        FB = [144, 180]
        vm = Cnt(a, "vmcnt"); lg = Cnt(a, "lgkmcnt")
        def dma(i, k):
            sl = (i & 1) * SL
            if k < 4:
                a(f"s_add_u32 m0, s46, {sl + 1024*k}")
                a(f"s_add_u32 s35, s33, {(k*144 + i*8)*1024}")
                a(f"buffer_load_dwordx4 v8, s[16:19], s35 offen lds")
            elif k < 8:
                n = k - 4
                a(f"s_add_u32 m0, s46, {sl + 4096 + 1024*n}")
                a(f"s_add_u32 s35, s34, {i*8*4096 + n*1024}")
                a(f"buffer_load_dwordx4 v8, s[20:23], s35 offen lds")
            else:
                if i & 1: return
                a(f"s_add_u32 m0, s46, {2*SL + ((i>>1)&1)*1024}")
                a(f"s_add_u32 s35, s37, {(i>>1)*1024}")
                a(f"buffer_load_dwordx4 v8, s[20:23], s35 offen lds")
            vm.issue(("d", i))
        def rd(i):
            sl = (i & 1) * SL; b = FB[i & 1]
            for q in range(4):
                a(f"ds_read_b128 v[{b+4*q}:{b+4*q+3}], v10 offset:{sl + 1024*q}"); lg.issue(("r", i))
            for n in range(4):
                a(f"ds_read_b128 v[{b+16+4*n}:{b+16+4*n+3}], v11 offset:{sl + 4096 + 1024*n}"); lg.issue(("r", i))
            a(f"ds_read_b128 v[{b+32}:{b+35}], v12 offset:{2*SL + ((i>>1)&1)*1024 + (i&1)*512}"); lg.issue(("r", i))
        for i in range(2):
            for k in range(9): dma(i, k)
        for r in range(ACC, ACC + 80):
            a(f"v_mov_b32 v{r}, 0")
        vm.need(("d", 0)); rd(0)
        for i in range(NCH):
            b = FB[i & 1]
            if i in (0, 1, 6, 12): st.stamp()
            lg.need(("r", i))
            if BARK and i % BARK == BARK - 1 and i + 1 < NCH:
                a("s_barrier")
            pieces = [k for k in range(9)] if i + 2 < NCH else []
            cnt = 0
            for n in range(5):
                for q in range(4):
                    c = ACC + (q * 5 + n) * 4
                    a(f"v_mfma_f32_16x16x32_bf16 v[{c}:{c+3}], v[{b+16+4*n}:{b+16+4*n+3}], v[{b+4*q}:{b+4*q+3}], v[{c}:{c+3}]")
                    if pieces and cnt < 9:
                        dma(i + 2, pieces.pop(0))
                    cnt += 1
                    if cnt == 12 and i + 1 < NCH:
                        vm.need(("d", i + 1)); rd(i + 1)
    else:
        gemm2_vgpr_loop(a, st, ACC)
    st.stamp()
    a("s_mov_b32 s38, 0xffff0000")
    a("s_movk_i32 s47, 72")
    for k in range(3):
        a(f"""
        s_add_u32 s39, s3, {8*k}
        s_mul_i32 s40, s39, 52
        s_lshr_b32 s40, s40, 8              ; q = T/5
        s_mul_i32 s41, s40, 5
        s_sub_u32 s41, s39, s41             ; n
        s_lshl_b32 s42, s11, 6
        s_lshl_b32 s40, s40, 4
        s_add_u32 s42, s42, s40
        v_add_u32 v7, s42, v3
        v_mul_u32_u24 v7, 1152, v7
        s_mul_i32 s42, s12, 144
        s_lshl_b32 s43, s41, 5
        s_add_u32 s42, s42, s43
        v_lshrrev_b32 v9, 4, v1
        v_lshl_add_u32 v7, v9, 3, v7
        v_add_u32 v{150+k}, s42, v7
        s_lshl_b32 s43, s41, 4
        v_lshl_add_u32 v9, v9, 2, s43
        v_cmp_gt_u32 s[{50+2*k}:{51+2*k}], 72, v9
        """.replace("v_cmp_gt_u32 s[", "v_cmp_lt_u32 s[").replace("], 72, v9", "], v9, s47"))
        if k == 0:
            pass
    s_ = ""
    a(f"""
    s_mul_i32 s46, s3, 20480
    v_lshl_add_u32 v4, v1, 4, s46
    s_cmp_ge_u32 s3, 4
    s_cselect_b64 s[54:55], 0, s[54:55]
    """)
    for k in range(3):
        a(f"s_mov_b64 exec, s[{50+2*k}:{51+2*k}]")
        if k == 2:
            a(f"s_cbranch_execz {name}_nold")
        a(f"buffer_load_dwordx2 v[{154+2*k}:{155+2*k}], v{150+k}, s[28:31], 0 offen")
    a.label(f"{name}_nold")
    a("s_mov_b64 exec, -1")
    for t in range(20):
        c = ACC + 4 * t
        a(f"ds_write_b128 v4, v[{c}:{c+3}] offset:{1024*t}")
    a("s_waitcnt lgkmcnt(0)")
    a("s_barrier")
    st.stamp()
    a(f"""
    v_lshlrev_b32 v4, 4, v0             ; tid*16
    v_add_u32 v5, {4*20480}, v4
    v_add_u32 v6, {3*20480}, v4
    v_add_u32 v7, {7*20480}, v4
    """)
    for k in range(3):
        if k == 2:
            a("s_cmp_ge_u32 s3, 4")
            a(f"s_cbranch_scc1 {name}_fin")
        R = 16 + 32 * (k & 1)
        for w in range(8):
            if (w & 3) == 3:
                base, off = ("v6" if w < 4 else "v7"), 8192 * k
            else:
                base, off = ("v4" if w < 4 else "v5"), (w & 3) * 20480 + 8192 * k
            a(f"ds_read_b128 v[{R+4*w}:{R+3+4*w}], {base} offset:{off}")
        a("s_waitcnt lgkmcnt(0)")
        for r in range(0, 4, 2):
            a(f"v_pk_add_f32 v[{R+r}:{R+r+1}], v[{R+r}:{R+r+1}], v[{R+4+r}:{R+5+r}]")
            a(f"v_pk_add_f32 v[{R+8+r}:{R+9+r}], v[{R+8+r}:{R+9+r}], v[{R+12+r}:{R+13+r}]")
            a(f"v_pk_add_f32 v[{R+16+r}:{R+17+r}], v[{R+16+r}:{R+17+r}], v[{R+20+r}:{R+21+r}]")
            a(f"v_pk_add_f32 v[{R+24+r}:{R+25+r}], v[{R+24+r}:{R+25+r}], v[{R+28+r}:{R+29+r}]")
        for r in range(0, 4, 2):
            a(f"v_pk_add_f32 v[{R+r}:{R+r+1}], v[{R+r}:{R+r+1}], v[{R+8+r}:{R+9+r}]")
            a(f"v_pk_add_f32 v[{R+16+r}:{R+17+r}], v[{R+16+r}:{R+17+r}], v[{R+24+r}:{R+25+r}]")
        for r in range(0, 4, 2):
            a(f"v_pk_add_f32 v[{R+r}:{R+r+1}], v[{R+r}:{R+r+1}], v[{R+16+r}:{R+17+r}]")
        h = 154 + 2 * k
        a(f"""
        v_cvt_pk_bf16_f32 v{R+4}, v{R}, v{R+1}
        v_cvt_pk_bf16_f32 v{R+5}, v{R+2}, v{R+3}
        v_lshlrev_b32 v{R}, 16, v{R+4}
        v_and_b32 v{R+1}, s38, v{R+4}
        v_lshlrev_b32 v{R+2}, 16, v{R+5}
        v_and_b32 v{R+3}, s38, v{R+5}
        """)
        if k == 0:
            a("s_waitcnt vmcnt(0)")
        a(f"""
        v_lshlrev_b32 v{R+4}, 16, v{h}
        v_and_b32 v{R+5}, s38, v{h}
        v_lshlrev_b32 v{R+6}, 16, v{h+1}
        v_and_b32 v{R+7}, s38, v{h+1}
        v_pk_add_f32 v[{R}:{R+1}], v[{R}:{R+1}], v[{R+4}:{R+5}]
        v_pk_add_f32 v[{R+2}:{R+3}], v[{R+2}:{R+3}], v[{R+6}:{R+7}]
        v_cvt_pk_bf16_f32 v{R+8}, v{R}, v{R+1}
        v_cvt_pk_bf16_f32 v{R+9}, v{R+2}, v{R+3}
        s_mov_b64 exec, s[{50+2*k}:{51+2*k}]
        buffer_store_dwordx2 v[{R+8}:{R+9}], v{150+k}, s[24:27], 0 offen
        s_mov_b64 exec, -1
        """)
    a.label(f"{name}_fin")
    st.stamp()
    st.dump(8, 3, 8)
    a.label(f"{name}_end")
    a("s_endpgm")
    return kernel_desc(name, 256, sgpr=102)


def w2pack_body(a, name, sblk):
    a(f"s_load_dwordx2 s[4:5], s[0:1], {ARG['w2']}")
    a(f"s_load_dwordx2 s[8:9], s[0:1], {ARG['ws']}")
    a("""
    v_lshrrev_b32 v2, 6, v0
    v_and_b32 v1, 63, v0
    s_nop 0
    v_readfirstlane_b32 s3, v2
    v_lshlrev_b32 v8, 4, v1
    s_waitcnt lgkmcnt(0)
    """)
    srd(a, 16, 4, 4608 * 1152)
    srd(a, 20, 8, 8 * 144 * 4608, WS_W2P)
    a(f"""
    s_mul_i32 s30, s3, 9216
    s_mul_i32 s31, s{sblk}, 36864
    s_add_u32 s31, s31, s30
    """)
    for i in range(9):
        a(f"s_add_u32 m0, s30, {1024*i}")
        a(f"s_add_u32 s32, s31, {1024*i}")
        a(f"buffer_load_dwordx4 v8, s[16:19], s32 offen lds")
    srd(a, 24, 8, 64 * 4 * 64, WS_FLG)
    a(f"""
    v_mov_b32 v12, 0
    v_lshlrev_b32 v13, 2, v0
    s_lshl_b32 s33, s{sblk}, 10
    buffer_store_dword v12, v13, s[24:27], s33 offen
    v_lshrrev_b32 v4, 2, v1
    v_mul_u32_u24 v9, 1152, v4
    v_and_b32 v5, 3, v1
    v_lshl_add_u32 v9, v5, 3, v9
    s_mul_i32 s33, s3, 288
    v_add_u32 v9, s33, v9
    s_mul_i32 s34, s3, {2*144*4096}
    s_lshl_b32 s35, s{sblk}, 12
    s_add_u32 s34, s34, s35
    s_lshl_b32 s36, s3, 4
    s_and_b32 s35, s{sblk}, 7
    s_add_u32 s36, s36, s35
    s_mul_i32 s36, s36, 9
    s_lshr_b32 s35, s{sblk}, 4
    s_add_u32 s36, s36, s35
    s_lshl_b32 s36, s36, 10
    s_bfe_u32 s35, s{sblk}, 0x10003
    s_lshl_b32 s35, s35, 9
    s_add_u32 s36, s36, s35
    s_add_u32 s36, s36, {8*144*4096}
    v_and_b32 v3, 15, v1
    v_cmp_gt_u32 vcc, 8, v3
    s_waitcnt vmcnt(0)
    s_barrier
    """)
    for c in range(2):
        for n in range(5):
            r = 16 + 4 * (c * 5 + n)
            o = c * 144 + n * 32
            a(f"ds_read_b64_tr_b16 v[{r}:{r+1}], v9 offset:{o}")
            a(f"ds_read_b64_tr_b16 v[{r+2}:{r+3}], v9 offset:{o + 16*1152}")
    a("s_waitcnt lgkmcnt(0)")
    a("""
    v_lshrrev_b32 v4, 4, v1
    v_lshl_add_u32 v7, v4, 3, v3
    v_lshlrev_b32 v7, 4, v7
    """)
    for c in range(2):
        for n in range(5):
            r = 16 + 4 * (c * 5 + n)
            a(f"s_add_u32 s35, s34, {c*144*4096}" if n < 4 else f"s_add_u32 s35, s36, {c*8*9216}")
            if n == 4:
                a("s_mov_b64 exec, vcc")
                a(f"buffer_store_dwordx4 v[{r}:{r+3}], v7, s[20:23], s35 offen")
                a("s_mov_b64 exec, -1")
            else:
                a(f"buffer_store_dwordx4 v[{r}:{r+3}], v8, s[20:23], s35 offen offset:{(n%4)*1024}")


def gemm2_vgpr_loop(a, st, ACC):
    FB = [144, 180, 216]
    vm = Cnt(a, "vmcnt")
    def ldx(i, q):
        r = FB[i % DEPTH] + 4 * q
        a(f"s_add_u32 s35, s33, {(q*144 + i*8)*1024}")
        a(f"buffer_load_dwordx4 v[{r}:{r+3}], v6, s[16:19], s35 offen")
        vm.issue(("x", i, q))
    def ldw(i, n):
        r = FB[i % DEPTH] + 16 + 4 * n
        a(f"s_add_u32 s36, s34, {i*8*4608 + (n//4)*4096}")
        if n == 4:
            a("s_mov_b64 exec, s[48:49]")
            a(f"buffer_load_dwordx4 v[{r}:{r+3}], v7, s[20:23], s36 offen")
            a("s_mov_b64 exec, -1")
        else:
            a(f"buffer_load_dwordx4 v[{r}:{r+3}], v8, s[20:23], s36 offen offset:{(n%4)*1024}")
        vm.issue(("w", i, n))
    for fb in FB:
        for k in range(4):
            a(f"v_mov_b32 v{fb+32+k}, 0")
    for i in range(DEPTH):
        for q in range(4): ldx(i, q)
        for n in range(5): ldw(i, n)
    for r in range(ACC, ACC + 80):
        a(f"v_mov_b32 v{r}, 0")
    for i in range(NCH):
        b = FB[i % DEPTH]
        if i in (0, 1, 6, 12): st.stamp()
        for n in range(5):
            for q in range(4):
                vm.need(("x", i, q), ("w", i, n))
                c = ACC + (q * 5 + n) * 4
                a(f"v_mfma_f32_16x16x32_bf16 v[{c}:{c+3}], v[{b+16+4*n}:{b+16+4*n+3}], v[{b+4*q}:{b+4*q+3}], v[{c}:{c+3}]")
                if n == 4 and i + DEPTH < NCH:
                    ldx(i + DEPTH, q)
            if i + DEPTH < NCH:
                ldw(i + DEPTH, n)
```

```python
from gen_common import *
import math
from gen_ln2 import ln2_embedded

G1_SLOT = 16384 + 2 * 9216
G1_LDS = 4 * G1_SLOT
NST = 18
import os
STMOD = os.environ.get('G1ST', '')
DRY = int(os.environ.get('G1DRY', '0'))
FINE = int(os.environ.get('G1FINE', '0'))
PRIO = int(os.environ.get('G1PRIO', '0'))
DEARLY = int(os.environ.get('G1DE', '1'))
ASC1 = int(os.environ.get('G1ASC1', '1'))
FUSE = int(os.environ.get('G1FUSE', '1'))

def gemm1_kernel(a, name, exact_round=False, prof=False):
    kernel_header(a, name)
    a("s_cmp_ge_u32 s2, 256")
    a(f"s_cbranch_scc1 {name}_end")
    a(f"s_load_dwordx4 s[4:7], s[0:1], {ARG['w1']}")
    a(f"s_load_dwordx2 s[8:9], s[0:1], {ARG['ws']}")
    a("""
    v_lshrrev_b32 v2, 6, v0
    v_and_b32 v1, 63, v0                ; lane
    s_nop 0
    v_readfirstlane_b32 s3, v2          ; wave
    s_and_b32 s10, s2, 7
    s_lshr_b32 s11, s2, 3
    s_and_b32 s12, s11, 3
    s_lshl_b32 s10, s10, 2
    s_add_u32 s10, s10, s12             ; cb
    s_lshr_b32 s11, s11, 2              ; rb
    s_and_b32 s13, s3, 3                ; wm
    """)
    if FUSE:
        if prof:
            a("s_memrealtime s[98:99]")
            a("s_memtime s[100:101]")
        a("s_lshl_b32 s54, s11, 5")
        a("s_add_u32 s54, s54, s10")
        a("s_cmp_ge_u32 s3, 6")
        a(f"s_cbranch_scc1 {name}_lnskip")
        ln2_embedded(a, 3 * G1_SLOT)
        a(f"s_branch {name}_lndone")
        a.label(f"{name}_lnskip")
        a("s_barrier")
        a.label(f"{name}_lndone")
    a("s_waitcnt lgkmcnt(0)")
    srd(a, 16, 8, 2048 * 1152, WS_HN)
    srd(a, 24, 8, 2048 * 9216, WS_HH)
    a("""
    s_cmp_ge_u32 s3, 6
    s_cselect_b32 s20, s6, s4
    s_cselect_b32 s21, s7, s5
    s_and_b32 s21, s21, 0xffff
    """)
    a(f"s_mov_b32 s22, {576*9216}")
    a("s_mov_b32 s23, 0x00020000")
    a(f"""
    v_and_b32 v3, 15, v1                ; l&15
    v_lshrrev_b32 v4, 4, v1             ; g
    v_bfe_u32 v5, v1, 2, 2
    v_sub_u32 v5, 4, v5
    v_and_b32 v5, 3, v5
    v_xor_b32 v5, v5, v4
    v_lshlrev_b32 v5, 4, v5
    v_lshl_add_u32 v2, v3, 6, v5
    s_lshl_b32 s14, s13, 12
    v_add_u32 v6, s14, v2               ; vXa0
    v_add_u32 v7, {2*G1_SLOT}, v6       ; vXa1
    v_lshrrev_b32 v4, 2, v1
    v_mul_u32_u24 v8, 288, v4
    v_and_b32 v5, 3, v1
    v_lshl_add_u32 v8, v5, 3, v8
    s_and_b32 s44, s10, 1
    s_xor_b32 s45, s44, 1
    s_lshl_b32 s45, s45, 8
    v_add_u32 v252, s45, v8             ; vW4a0
    v_add_u32 v253, {2*G1_SLOT}, v252   ; vW4a1
    s_lshl_b32 s45, s44, 5
    s_lshr_b32 s46, s3, 2
    s_lshl_b32 s46, s46, 7
    s_add_u32 s45, s45, s46
    v_add_u32 v8, s45, v8
    v_add_u32 v9, {2*G1_SLOT}, v8       ; vWa1
    """)
    a("s_cmp_ge_u32 s3, 4")
    a(f"s_cbranch_scc1 {name}_p1")
    gemm1_path(a, name, 0, exact_round, prof)
    a(f"s_branch {name}_end")
    a.label(f"{name}_p1")
    gemm1_path(a, name, 1, exact_round, prof)
    a.label(f"{name}_end")
    a("s_endpgm")
    return kernel_desc(name, 256, sgpr=102)

def gemm1_path(a, name, wn, exact_round, prof):
    st = Stamps(a, prof, kid=1)
    NT = 5 if wn == 0 else 4
    T0 = 0 if wn == 0 else 5
    VX = [16, 32]
    VW = 48
    ACC = 88
    nd = 4 if wn == 0 else 5
    lg = Cnt(a, "lgkmcnt"); vm = Cnt(a, "vmcnt")
    def acc(i, j, mat):
        return ACC + ((i * NT + j) * 2 + mat) * 4
    if not (prof and FUSE):
        st.stamp()
    if wn == 0:
        a(f"""
        v_lshlrev_b32 v10, 4, v1
        s_lshl_b32 s14, s11, 4
        s_lshl_b32 s15, s13, 2
        s_add_u32 s14, s14, s15
        s_mul_i32 s31, s14, {18*1024}
        s_lshl_b32 s30, s13, 12
        """)
    else:
        a(f"""
        s_and_b32 s14, s3, 1                ; hv
        s_mul_i32 s15, s14, {16*9216}
        s_mul_i32 s31, s10, 288
        s_add_u32 s15, s15, s31
        s_mov_b32 s32, {(1<<32)//18 + 1}
        s_lshr_b32 s33, s13, 1              ; matrix
        s_mul_i32 s30, s33, 9216
        s_mul_i32 s33, s14, 4608
        s_add_u32 s30, s30, s33
        s_add_u32 s30, s30, 16384
        """)
        for i in range(5):
            a(f"""
            v_add_u32 v4, {64*i}, v1
            v_mul_hi_u32 v5, v4, s32            ; row
            v_mul_u32_u24 v15, 18, v5
            v_sub_u32 v4, v4, v15               ; c
            v_mul_u32_u24 v5, 9216, v5
            v_lshl_add_u32 v{10+i}, v4, 4, v5
            v_add_u32 v{10+i}, s15, v{10+i}
            """)
    def dma_piece(s, i):
        slot = s & 3
        if wn == 0:
            a(f"s_add_u32 m0, s30, {slot*G1_SLOT + 1024*i}")
            a(f"s_add_u32 s34, s31, {(i*18 + s)*1024}")
            a(f"buffer_load_dwordx4 v10, s[16:19], s34 offen" + (" sc1" if (FUSE and ASC1) else "") + " lds")
        else:
            a(f"s_add_u32 m0, s30, {slot*G1_SLOT + 1024*i}")
            a(f"s_mov_b32 s34, {s*32*9216}")
            if i == 4:
                a("s_mov_b64 exec, 0xffffffff")
            a(f"buffer_load_dwordx4 v{10+i}, s[20:23], s34 offen lds")
            if i == 4:
                a("s_mov_b64 exec, -1")
        vm.issue(("d", s))
    def xread(s, i):
        slot = s & 3
        base = "v6" if slot < 2 else "v7"
        off = (slot & 1) * G1_SLOT
        b = VX[s & 1]
        a(f"ds_read_b128 v[{b+4*i}:{b+4*i+3}], {base} offset:{off + 1024*i}")
        lg.issue(("x", s, i))
    def wread(s, j, mat, h):
        slot = s & 3
        base = "v8" if slot < 2 else "v9"
        if j == 4:
            base = "v252" if slot < 2 else "v253"
        off = (slot & 1) * G1_SLOT + 16384
        r = VW + (j * 2 + mat) * 4 + 2 * h
        o = off + mat * 9216 + (j & 3) * 32 + h * 16 * 288
        a(f"ds_read_b64_tr_b16 v[{r}:{r+1}], {base} offset:{o}")
        lg.issue(("w", s, j, mat, h))
    def fused_ln2():
        if prof: a("s_memtime s[60:61]")
        a("s_waitcnt vmcnt(0) lgkmcnt(0)")
        if prof: a("s_memtime s[62:63]")
        vm.done = vm.issued
        a("s_barrier")
        if wn == 1:
            for s_ in range(3):
                for i in range(nd):
                    dma_piece(s_, i)
        if prof: a("s_memtime s[64:65]")
        if wn == 0:
            a("s_cmp_lg_u32 s3, 0")
            a(f"s_cbranch_scc1 {name}_go")
            srd(a, 48, 8, 64 * 4 * 64, WS_FLG)
            a(f"""
            s_lshl_b32 s52, s11, 7              ; rb*128
            s_lshl_b32 s53, s10, 2
            s_add_u32 s53, s53, s52
            v_mov_b32 v100, 0
            v_mov_b32 v101, 1
            v_lshlrev_b32 v103, 2, v1
            s_mov_b64 exec, 1
            buffer_store_dword v101, v100, s[48:51], s53 offen sc1
            s_mov_b64 exec, 0xffffffff
            s_mov_b32 s53, 0
            """)
            a.label(f"{name}_poll")
            a(f"""
            buffer_load_dword v102, v103, s[48:51], s52 offen sc1
            s_waitcnt vmcnt(0)
            v_cmp_ne_u32 vcc, 0, v102
            s_add_u32 s53, s53, 1
            s_cmp_ge_u32 s53, 0x40000
            s_cbranch_scc1 {name}_go
            s_cmp_eq_u32 vcc_lo, -1
            s_cbranch_scc1 {name}_go
            s_sleep 1
            s_branch {name}_poll
            """)
            a.label(f"{name}_go")
            a("s_mov_b64 exec, -1")
        a("s_barrier")
        if prof:
            a("s_memtime s[66:67]")
            st.n = 4
    if FUSE:
        fused_ln2()
    if not (FUSE and wn == 1):
        for s in range(3):
            for i in range(nd):
                dma_piece(s, i)
    for r in range(ACC, ACC + 32 * NT):
        a(f"v_mov_b32 v{r}, 0")
    if DRY:
        a("s_mov_b32 s47, 1")
        a("s_mov_b64 exec, 0")
        a(f"s_branch {name}_epi{wn}")
        a.label(f"{name}_back{wn}")
        a("s_mov_b64 exec, -1")
        a("s_mov_b32 s47, 0")
    if PRIO and wn == 1:
        a("s_setprio 1")
    vm.need(("d", 0))
    a("s_barrier")
    st.stamp()
    for i in range(4):
        xread(0, i)
    for j in range(NT):
        for mat in range(2):
            for h in range(2):
                wread(0, j, mat, h)
    for s in range(NST):
        nxt = s + 1 < NST
        if FINE and s in (7, 8): st.stamp()
        if nxt:
            vm.need(("d", s + 1))
            if FINE and s in (7, 8): st.stamp()
            a("s_barrier")
        if FINE:
            if s in (7, 8): st.stamp()
        elif s in (1, 5, 9, 13, 17):
            st.stamp()
        b = VX[s & 1]
        fill = []
        early = []
        if nxt:
            fill += [("x", i) for i in range(4)]
        if s + 3 < NST:
            dm = [("d", i) for i in range(nd)]
            if DEARLY:
                early = dm
            else:
                f2 = []
                while fill or dm:
                    if fill: f2.append(fill.pop(0))
                    if dm: f2.append(dm.pop(0))
                fill = f2
        pend = []
        groups = [(j, mat) for j in range(NT) for mat in range(2)]
        for gi, (j, mat) in enumerate(groups):
            w = VW + (j * 2 + mat) * 4
            for i in range(4):
                lg.need(("w", s, j, mat, 0), ("w", s, j, mat, 1), ("x", s, i))
                c = acc(i, j, mat)
                a(f"v_mfma_f32_16x16x32_bf16 v[{c}:{c+3}], v[{w}:{w+3}], v[{b+4*i}:{b+4*i+3}], v[{c}:{c+3}]")
                if early:
                    k, idx = early.pop(0)
                    dma_piece(s + 3, idx)
                elif pend:
                    wread(*pend.pop(0))
                elif fill:
                    k, idx = fill.pop(0)
                    if k == "x": xread(s + 1, idx)
                    else: dma_piece(s + 3, idx)
            if nxt:
                pend += [(s + 1, j, mat, 0), (s + 1, j, mat, 1)]
        while pend:
            wread(*pend.pop(0))
        while fill:
            k, idx = fill.pop(0)
            if k == "x": xread(s + 1, idx)
            else: dma_piece(s + 3, idx)
    st.stamp()
    a.label(f"{name}_epi{wn}")
    a(f"""
    s_lshl_b32 s14, s11, 4
    s_lshl_b32 s15, s13, 2
    s_add_u32 s14, s14, s15
    s_mul_i32 s35, s14, {144*1024}
    s_mul_i32 s36, s10, 9
    s_add_u32 s39, s36, s44
    s_add_u32 s39, s39, {4*wn}
    s_lshl_b32 s39, s39, 9
    s_add_u32 s39, s39, s35
    s_xor_b32 s40, s44, 1
    s_lshl_b32 s40, s40, 3
    s_add_u32 s40, s40, s36
    s_lshr_b32 s40, s40, 1
    s_lshl_b32 s40, s40, 10
    s_lshl_b32 s41, s44, 3
    s_add_u32 s40, s40, s41
    s_add_u32 s40, s40, s35
    s_mov_b32 s42, {f32hex(-math.log2(math.e))}
    s_mov_b32 s43, {f32hex(-math.log2(math.e))}
    s_nop 7
    """)
    def silu_multi(items):
        G = [(acc(i, j, 0), acc(i, j, 1), T, D) for (i, j, T, D) in items]
        for g, u, T, D in G:
            a(f"v_pk_mul_f32 v[{T}:{T+1}], v[{g}:{g+1}], s[42:43]")
            a(f"v_pk_mul_f32 v[{T+2}:{T+3}], v[{g+2}:{g+3}], s[42:43]")
        for g, u, T, D in G:
            for r in range(4): a(f"v_exp_f32 v{T+r}, v{T+r}")
        for g, u, T, D in G:
            a(f"v_pk_mul_f32 v[{g}:{g+1}], v[{g}:{g+1}], v[{u}:{u+1}]")
            a(f"v_pk_mul_f32 v[{g+2}:{g+3}], v[{g+2}:{g+3}], v[{u+2}:{u+3}]")
        for g, u, T, D in G:
            a(f"v_pk_add_f32 v[{T}:{T+1}], v[{T}:{T+1}], 1.0 op_sel_hi:[1,0]")
            a(f"v_pk_add_f32 v[{T+2}:{T+3}], v[{T+2}:{T+3}], 1.0 op_sel_hi:[1,0]")
        for g, u, T, D in G:
            for r in range(4): a(f"v_rcp_f32 v{T+r}, v{T+r}")
        a("s_nop 0")
        for g, u, T, D in G:
            a(f"v_pk_mul_f32 v[{T}:{T+1}], v[{g}:{g+1}], v[{T}:{T+1}]")
            a(f"v_pk_mul_f32 v[{T+2}:{T+3}], v[{g+2}:{g+3}], v[{T+2}:{T+3}]")
        for g, u, T, D in G:
            a(f"v_cvt_pk_bf16_f32 v{D}, v{T}, v{T+1}")
            a(f"v_cvt_pk_bf16_f32 v{D+1}, v{T+2}, v{T+3}")
    k = 0
    for p in range(2):
        for i in range(4):
            T = 16 + 16 * (k & 3); k += 1
            silu_multi([(i, 2 * p, T, T + 8), (i, 2 * p + 1, T + 4, T + 10)])
            a(f"s_add_u32 s41, s39, {i*144*1024 + p*1024}")
            a(f"buffer_store_dwordx4 v[{T+8}:{T+11}], v2, s[24:27], s41 offen")
    if wn == 0:
        for i2 in range(2):
            T = 16 + 16 * (k & 3); k += 1
            silu_multi([(2 * i2, 4, T, T + 8), (2 * i2 + 1, 4, T + 4, T + 10)])
            for q in range(2):
                a(f"s_add_u32 s41, s40, {(2*i2+q)*144*1024}")
                a(f"buffer_store_dwordx2 v[{T+8+2*q}:{T+9+2*q}], v2, s[24:27], s41 offen")
    if DRY:
        a("s_cmp_eq_u32 s47, 1")
        a(f"s_cbranch_scc1 {name}_back{wn}")
    st.stamp()
    if prof:
        a("s_waitcnt vmcnt(0)")
    st.stamp()
    if prof and FUSE:
        a("s_waitcnt lgkmcnt(0)")
        a(f"s_mov_b32 s{st.base + 2*st.n}, s100")
        st.n += 1
    st.dump(8, 3, 8)
```

```python
from gen_common import *

E_SLOT = 16384 + 18432
E_LDS = 4 * E_SLOT
ENST = 18
import os
EPOL = os.environ.get('EPOL', 'sc1')

def gemm2e_kernel(a, name, prof=False):
    kernel_header(a, name)
    a("s_cmp_ge_u32 s2, 256")
    a(f"s_cbranch_scc1 {name}_end")
    a(f"s_load_dwordx2 s[6:7], s[0:1], {ARG['out']}")
    a(f"s_load_dwordx2 s[8:9], s[0:1], {ARG['ws']}")
    a("""
    v_lshrrev_b32 v2, 6, v0
    v_and_b32 v1, 63, v0                ; lane
    s_nop 0
    v_readfirstlane_b32 s3, v2          ; wave
    s_and_b32 s10, s2, 7                ; x
    s_lshr_b32 s11, s2, 3               ; j
    s_and_b32 s12, s11, 3               ; cb
    s_lshr_b32 s11, s11, 2
    s_and_b32 s13, s10, 1
    s_lshl_b32 s13, s13, 3
    s_add_u32 s11, s11, s13             ; rb (0..15)
    s_lshr_b32 s10, s10, 1              ; q
    s_and_b32 s13, s3, 3                ; wm
    s_waitcnt lgkmcnt(0)
    """)
    srd(a, 16, 8, 2048 * 9216, WS_HH)
    srd(a, 20, 8, 4 * 144 * 9216, WS_W2P)
    srd(a, 24, 6, 2048 * 1152)
    srd(a, 28, 8, 2048 * 1152, WS_H)
    srd(a, 32, 8, 64 * 4 * 36864, WS_PART)
    srd(a, 36, 8, 64 * 64, WS_FLG + 4096)
    a(f"""
    v_and_b32 v3, 15, v1
    v_lshrrev_b32 v4, 4, v1             ; g
    v_bfe_u32 v5, v1, 2, 2
    v_sub_u32 v5, 4, v5
    v_and_b32 v5, 3, v5
    v_xor_b32 v5, v5, v4
    v_lshlrev_b32 v5, 4, v5
    v_lshl_add_u32 v5, v3, 6, v5
    s_lshl_b32 s14, s13, 11             ; wm*2048
    v_add_u32 v6, s14, v5               ; vXa0
    v_add_u32 v7, {2*E_SLOT}, v6        ; vXa1
    v_lshlrev_b32 v10, 4, v1            ; lane*16
    s_lshr_b32 s14, s3, 2
    s_mul_i32 s14, s14, 5120            ; N0*1024
    v_add_u32 v8, s14, v10              ; vWa0
    v_add_u32 v9, {2*E_SLOT}, v8        ; vWa1
    s_lshl_b32 s15, s11, 2
    s_add_u32 s15, s15, s12
    """)
    a("s_cmp_ge_u32 s3, 4")
    a(f"s_cbranch_scc1 {name}_p1")
    path(a, name, 0, prof)
    a(f"s_branch {name}_end")
    a.label(f"{name}_p1")
    path(a, name, 1, prof)
    a.label(f"{name}_end")
    a("s_endpgm")
    return kernel_desc(name, 200, sgpr=102)

def path(a, name, wn, prof):
    st = Stamps(a, prof, kid=2, vr=196)
    NT = 5 if wn == 0 else 4
    ACC = 16
    FB = [56, 112]
    nd = 4 if wn == 0 else 5
    lg = Cnt(a, "lgkmcnt"); vm = Cnt(a, "vmcnt")
    st.stamp()
    def acc(i, n): return ACC + (n * 2 + i) * 4
    if wn == 0:
        a(f"""
        s_lshl_b32 s40, s11, 3
        s_lshl_b32 s41, s13, 1
        s_add_u32 s40, s40, s41
        s_mul_i32 s40, s40, 144
        s_mul_i32 s41, s10, 36
        s_add_u32 s40, s40, s41
        s_lshl_b32 s40, s40, 10
        s_lshl_b32 s42, s13, 11
        """)
    else:
        a(f"""
        s_mul_i32 s40, s12, 144
        s_mul_i32 s41, s10, 36
        s_add_u32 s40, s40, s41
        s_mul_i32 s40, s40, 9216
        s_mul_i32 s42, s13, 4608
        s_add_u32 s40, s40, s42
        s_add_u32 s42, s42, 16384
        """)
    def dma_piece(s, k):
        slot = s & 3
        if wn == 0:
            h, i = k >> 1, k & 1
            a(f"s_add_u32 m0, s42, {slot*E_SLOT + h*8192 + i*1024}")
            a(f"s_add_u32 s43, s40, {(i*144 + 2*s + h)*1024}")
            a(f"buffer_load_dwordx4 v10, s[16:19], s43 offen lds")
        else:
            a(f"s_add_u32 m0, s42, {slot*E_SLOT + k*1024}")
            a(f"s_add_u32 s43, s40, {s*18432 + k*1024}")
            if k == 4: a("s_mov_b64 exec, 0xffffffff")
            a(f"buffer_load_dwordx4 v10, s[20:23], s43 offen lds")
            if k == 4: a("s_mov_b64 exec, -1")
        vm.issue(("d", s))
    def xread(s, h, i):
        slot = s & 3; base = "v6" if slot < 2 else "v7"
        r = FB[s & 1] + (h * 2 + i) * 4
        a(f"ds_read_b128 v[{r}:{r+3}], {base} offset:{(slot&1)*E_SLOT + h*8192 + i*1024}")
        lg.issue(("x", s, h, i))
    def wread(s, h, n):
        slot = s & 3; base = "v8" if slot < 2 else "v9"
        r = FB[s & 1] + 16 + (h * 5 + n) * 4
        a(f"ds_read_b128 v[{r}:{r+3}], {base} offset:{(slot&1)*E_SLOT + 16384 + h*9216 + n*1024}")
        lg.issue(("w", s, h, n))
    def reads(s):
        L = []
        for h in range(2):
            L += [(xread, (s, h, 0)), (xread, (s, h, 1))] + [(wread, (s, h, n)) for n in range(NT)]
        return L
    for s in range(3):
        for k in range(nd): dma_piece(s, k)
    for r in range(ACC, ACC + NT * 8):
        a(f"v_mov_b32 v{r}, 0")
    vm.need(("d", 0))
    a("s_barrier")
    st.stamp()
    for f, args in reads(0): f(*args)
    for s in range(ENST):
        nxt = s + 1 < ENST
        if nxt:
            vm.need(("d", s + 1))
            a("s_barrier")
        if s in (1, 9): st.stamp()
        fill = reads(s + 1) if nxt else []
        if s + 3 < ENST:
            dm = [(dma_piece, (s + 3, k)) for k in range(nd)]
            f2 = []
            while fill or dm:
                for _ in range(2):
                    if fill: f2.append(fill.pop(0))
                if dm: f2.append(dm.pop(0))
            fill = f2
        b = FB[s & 1]
        for h in range(2):
            for n in range(NT):
                for i in range(2):
                    lg.need(("x", s, h, i), ("w", s, h, n))
                    c = acc(i, n); w = b + 16 + (h * 5 + n) * 4; x = b + (h * 2 + i) * 4
                    a(f"v_mfma_f32_16x16x32_bf16 v[{c}:{c+3}], v[{w}:{w+3}], v[{x}:{x+3}], v[{c}:{c+3}]")
                    if fill:
                        f, args = fill.pop(0); f(*args)
        while fill:
            f, args = fill.pop(0); f(*args)
    st.stamp()
    a(f"""
    s_lshl_b32 s44, s15, 2              ; group*4
    s_mul_i32 s45, s13, 9
    s_add_u32 s45, s45, {5*wn}
    s_add_u32 s46, s44, s10
    s_mul_i32 s46, s46, 36
    s_add_u32 s46, s46, s45
    s_lshl_b32 s46, s46, 10
    s_sub_u32 s51, s10, s13
    s_sub_u32 s51, s51, {5*wn}
    s_and_b32 s51, s51, 3
    s_lshl_b32 s47, s11, 7
    s_lshl_b32 s48, s13, 5
    s_add_u32 s47, s47, s48
    v_add_u32 v11, s47, v3
    v_mul_u32_u24 v11, 1152, v11
    v_lshl_add_u32 v11, v4, 3, v11
    s_mul_i32 s47, s12, 288
    s_add_u32 s47, s47, {wn*160}
    v_add_u32 v11, s47, v11
    v_add_u32 v12, {16*1152}, v11       ; i=1
    s_mov_b32 s49, 0xffff0000
    """)
    HR = 168
    for n in range(NT):
        c = ACC + 8 * n; R = 56 + 4 * n
        a(f"s_cmp_eq_u32 s51, {n & 3}")
        a(f"s_cbranch_scc1 {name}_k{wn}_{n}")
        for k in range(4):
            a(f"v_cvt_pk_bf16_f32 v{R+k}, v{c+2*k}, v{c+2*k+1}")
        a(f"s_add_u32 s47, s46, {(n//4)*4096}")
        a(f"buffer_store_dwordx4 v[{R}:{R+3}], v10, s[32:35], s47 offen offset:{(n%4)*1024} sc1")
        a(f"s_branch {name}_n{wn}_{n}")
        a.label(f"{name}_k{wn}_{n}")
        for i in range(2):
            a(f"buffer_load_dwordx2 v[{HR+2*(n*2+i)}:{HR+2*(n*2+i)+1}], v{11+i}, s[28:31], 0 offen offset:{32*n}")
        a.label(f"{name}_n{wn}_{n}")
    a("s_waitcnt vmcnt(0)")
    a("s_barrier")
    a(f"""
    s_lshl_b32 s47, s15, 6
    v_mov_b32 v13, 0
    s_mov_b32 s50, 0
    """)
    if wn == 0:
        a(f"""
        s_cmp_lg_u32 s3, 0
        s_cbranch_scc1 {name}_poll{wn}
        s_lshl_b32 s48, s10, 2
        s_add_u32 s48, s48, s47
        v_mov_b32 v14, 1
        s_mov_b64 exec, 1
        buffer_store_dword v14, v13, s[36:39], s48 offen sc1
        s_mov_b64 exec, -1
        """)
    a.label(f"{name}_poll{wn}")
    a(f"""
    buffer_load_dwordx4 v[56:59], v13, s[36:39], s47 offen sc1
    s_waitcnt vmcnt(0)
    v_add_u32 v56, v56, v57
    v_add3_u32 v56, v56, v58, v59
    s_add_u32 s50, s50, 1
    v_readfirstlane_b32 s48, v56
    s_cmp_ge_u32 s50, 0x40000
    s_cbranch_scc1 {name}_got{wn}
    s_cmp_ge_u32 s48, 4
    s_cbranch_scc1 {name}_got{wn}
    s_sleep 4
    s_branch {name}_poll{wn}
    """)
    a.label(f"{name}_got{wn}")
    st.stamp()
    for n in range(NT):
        a(f"s_cmp_lg_u32 s51, {n & 3}")
        a(f"s_cbranch_scc1 {name}_s{wn}_{n}")
        for d in range(1, 4):
            a(f"""
            s_add_u32 s47, s10, {d}
            s_and_b32 s47, s47, 3
            s_add_u32 s47, s47, s44
            s_mul_i32 s47, s47, 36
            s_add_u32 s47, s47, s45
            s_lshl_b32 s47, s47, 10
            s_add_u32 s47, s47, {(n//4)*4096}
            buffer_load_dwordx4 v[{56+4*(d-1)}:{59+4*(d-1)}], v10, s[32:35], s47 offen offset:{(n%4)*1024} sc1
            """)
        c = ACC + 8 * n
        for d in range(1, 4):
            a(f"s_waitcnt vmcnt({3-d})")
            for k in range(4):
                T = 120 + 2 * (k & 1); R = 56 + 4 * (d - 1) + k
                a(f"v_lshlrev_b32 v{T}, 16, v{R}")
                a(f"v_and_b32 v{T+1}, s49, v{R}")
                a(f"v_pk_add_f32 v[{c+2*k}:{c+2*k+1}], v[{c+2*k}:{c+2*k+1}], v[{T}:{T+1}]")
        for i in range(2):
            t = n * 2 + i
            c = ACC + 4 * t; R = 124 + 4 * (t & 1); h = HR + 2 * t
            a(f"""
            v_cvt_pk_bf16_f32 v{R}, v{c}, v{c+1}
            v_cvt_pk_bf16_f32 v{R+1}, v{c+2}, v{c+3}
            v_lshlrev_b32 v{c}, 16, v{R}
            v_and_b32 v{c+1}, s49, v{R}
            v_lshlrev_b32 v{c+2}, 16, v{R+1}
            v_and_b32 v{c+3}, s49, v{R+1}
            v_lshlrev_b32 v{R}, 16, v{h}
            v_and_b32 v{R+1}, s49, v{h}
            v_lshlrev_b32 v{R+2}, 16, v{h+1}
            v_and_b32 v{R+3}, s49, v{h+1}
            v_pk_add_f32 v[{c}:{c+1}], v[{c}:{c+1}], v[{R}:{R+1}]
            v_pk_add_f32 v[{c+2}:{c+3}], v[{c+2}:{c+3}], v[{R+2}:{R+3}]
            v_cvt_pk_bf16_f32 v{h}, v{c}, v{c+1}
            v_cvt_pk_bf16_f32 v{h+1}, v{c+2}, v{c+3}
            buffer_store_dwordx2 v[{h}:{h+1}], v{11+i}, s[24:27], 0 offen offset:{32*n}
            """)
        a.label(f"{name}_s{wn}_{n}")
    a.label(f"{name}_fin{wn}")
    st.stamp()
    st.dump(8, 3, 8)


def w2pack_body(a, name, sblk):
    a(f"s_load_dwordx2 s[4:5], s[0:1], {ARG['w2']}")
    a(f"s_load_dwordx2 s[8:9], s[0:1], {ARG['ws']}")
    a("""
    v_lshrrev_b32 v2, 6, v0
    v_and_b32 v1, 63, v0
    s_nop 0
    v_readfirstlane_b32 s3, v2
    v_lshlrev_b32 v8, 4, v1
    s_waitcnt lgkmcnt(0)
    """)
    srd(a, 16, 4, 4608 * 1152)
    srd(a, 20, 8, 4 * 144 * 9216, WS_W2P)
    srd(a, 24, 8, 64 * 4 * 64, WS_FLG)
    a(f"""
    s_mul_i32 s30, s3, 9216
    s_mul_i32 s31, s{sblk}, 36864
    s_add_u32 s31, s31, s30
    """)
    for i in range(9):
        a(f"s_add_u32 m0, s30, {1024*i}")
        a(f"s_add_u32 s32, s31, {1024*i}")
        a(f"buffer_load_dwordx4 v8, s[16:19], s32 offen lds")
    a(f"""
    v_mov_b32 v12, 0
    v_lshlrev_b32 v13, 2, v0
    s_lshl_b32 s33, s{sblk}, 10
    buffer_store_dword v12, v13, s[24:27], s33 offen
    v_lshrrev_b32 v4, 2, v1
    v_mul_u32_u24 v9, 1152, v4
    v_and_b32 v5, 3, v1
    v_lshl_add_u32 v9, v5, 3, v9
    s_mul_i32 s33, s3, 288
    v_add_u32 v9, s33, v9
    s_mul_i32 s34, s3, {144*9216}
    s_mul_i32 s35, s{sblk}, 9216
    s_add_u32 s34, s34, s35
    s_waitcnt vmcnt(0)
    s_barrier
    """)
    for n in range(9):
        r = 16 + 4 * n
        a(f"ds_read_b64_tr_b16 v[{r}:{r+1}], v9 offset:{n*32}")
        a(f"ds_read_b64_tr_b16 v[{r+2}:{r+3}], v9 offset:{n*32 + 16*1152}")
    for n in range(9):
        r = 16 + 4 * n
        a(f"s_waitcnt lgkmcnt({min(15, 2*(8-n))})")
        a(f"s_add_u32 s35, s34, {(n//4)*4096}")
        a(f"buffer_store_dwordx4 v[{r}:{r+3}], v8, s[20:23], s35 offen offset:{(n%4)*1024}")
```

```python
from gen_common import *
import math
from gen_ln2 import ln2_embedded

G1_SLOT = 16384 + 2 * 9216
G1_LDS = 4 * G1_SLOT
NST = 18
import os
STMOD = os.environ.get('G1ST', '')
DRY = int(os.environ.get('G1DRY', '0'))
FINE = int(os.environ.get('G1FINE', '0'))
PRIO = int(os.environ.get('G1PRIO', '0'))
DEARLY = int(os.environ.get('G1DE', '1'))
ASC1 = int(os.environ.get('G1ASC1', '1'))
PAIR = int(os.environ.get('G1PAIR', '0'))
GSLEEP = int(os.environ.get('GSLEEP', '1'))
FUSE = int(os.environ.get('G1FUSE', '1'))

def gemm1_kernel(a, name, exact_round=False, prof=False):
    kernel_header(a, name)
    a("s_cmp_ge_u32 s2, 256")
    a(f"s_cbranch_scc1 {name}_end")
    a(f"s_load_dwordx4 s[4:7], s[0:1], {ARG['w1']}")
    a(f"s_load_dwordx2 s[8:9], s[0:1], {ARG['ws']}")
    a("""
    v_lshrrev_b32 v2, 6, v0
    v_and_b32 v1, 63, v0                ; lane
    s_nop 0
    v_readfirstlane_b32 s3, v2          ; wave
    s_and_b32 s10, s2, 7
    s_lshr_b32 s11, s2, 3
    s_and_b32 s12, s11, 3
    s_lshl_b32 s10, s10, 2
    s_add_u32 s10, s10, s12             ; cb
    s_lshr_b32 s11, s11, 2              ; rb
    s_and_b32 s13, s3, 3                ; wm
    """)
    if FUSE:
        if prof:
            a("s_memrealtime s[98:99]")
            a("s_memtime s[100:101]")
        a("s_lshl_b32 s54, s11, 5")
        a("s_add_u32 s54, s54, s10")
        a("s_cmp_ge_u32 s3, 6")
        a(f"s_cbranch_scc1 {name}_lnskip")
        ln2_embedded(a, 3 * G1_SLOT)
        a(f"s_branch {name}_lndone")
        a.label(f"{name}_lnskip")
        a("s_barrier")
        a.label(f"{name}_lndone")
    a("s_waitcnt lgkmcnt(0)")
    srd(a, 16, 8, 2048 * 1152, WS_HN)
    srd(a, 24, 8, 2048 * 9216, WS_HH)
    a("""
    s_cmp_ge_u32 s3, 6
    s_cselect_b32 s20, s6, s4
    s_cselect_b32 s21, s7, s5
    s_and_b32 s21, s21, 0xffff
    """)
    a(f"s_mov_b32 s22, {576*9216}")
    a("s_mov_b32 s23, 0x00020000")
    a(f"""
    v_and_b32 v3, 15, v1                ; l&15
    v_lshrrev_b32 v4, 4, v1             ; g
    v_bfe_u32 v5, v1, 2, 2
    v_sub_u32 v5, 4, v5
    v_and_b32 v5, 3, v5
    v_xor_b32 v5, v5, v4
    v_lshlrev_b32 v5, 4, v5
    v_lshl_add_u32 v2, v3, 6, v5
    s_lshl_b32 s14, s13, 12
    v_add_u32 v6, s14, v2               ; vXa0
    v_add_u32 v7, {2*G1_SLOT}, v6       ; vXa1
    v_lshrrev_b32 v4, 2, v1
    v_mul_u32_u24 v8, 288, v4
    v_and_b32 v5, 3, v1
    v_lshl_add_u32 v8, v5, 3, v8
    s_and_b32 s44, s10, 1
    s_xor_b32 s45, s44, 1
    s_lshl_b32 s45, s45, 8
    v_add_u32 v252, s45, v8             ; vW4a0
    v_add_u32 v253, {2*G1_SLOT}, v252   ; vW4a1
    s_lshl_b32 s45, s44, 5
    s_lshr_b32 s46, s3, 2
    s_lshl_b32 s46, s46, 7
    s_add_u32 s45, s45, s46
    v_add_u32 v8, s45, v8
    v_add_u32 v9, {2*G1_SLOT}, v8       ; vWa1
    """)
    a("s_cmp_ge_u32 s3, 4")
    a(f"s_cbranch_scc1 {name}_p1")
    gemm1_path(a, name, 0, exact_round, prof)
    a(f"s_branch {name}_end")
    a.label(f"{name}_p1")
    gemm1_path(a, name, 1, exact_round, prof)
    a.label(f"{name}_end")
    a("s_endpgm")
    return kernel_desc(name, 256, sgpr=102)

def gemm1_path(a, name, wn, exact_round, prof):
    st = Stamps(a, prof, kid=1)
    NT = 5 if wn == 0 else 4
    T0 = 0 if wn == 0 else 5
    VX = [16, 32]
    VW = 48
    ACC = 88
    nd = 4 if wn == 0 else 5
    lg = Cnt(a, "lgkmcnt"); vm = Cnt(a, "vmcnt")
    def acc(i, j, mat):
        return ACC + ((i * NT + j) * 2 + mat) * 4
    if not (prof and FUSE):
        st.stamp()
    if wn == 0:
        a(f"""
        v_lshlrev_b32 v10, 4, v1
        s_lshl_b32 s14, s11, 4
        s_lshl_b32 s15, s13, 2
        s_add_u32 s14, s14, s15
        s_mul_i32 s31, s14, {18*1024}
        s_lshl_b32 s30, s13, 12
        """)
    else:
        a(f"""
        s_and_b32 s14, s3, 1                ; hv
        s_mul_i32 s15, s14, {16*9216}
        s_mul_i32 s31, s10, 288
        s_add_u32 s15, s15, s31
        s_mov_b32 s32, {(1<<32)//18 + 1}
        s_lshr_b32 s33, s13, 1              ; matrix
        s_mul_i32 s30, s33, 9216
        s_mul_i32 s33, s14, 4608
        s_add_u32 s30, s30, s33
        s_add_u32 s30, s30, 16384
        """)
        for i in range(5):
            a(f"""
            v_add_u32 v4, {64*i}, v1
            v_mul_hi_u32 v5, v4, s32            ; row
            v_mul_u32_u24 v15, 18, v5
            v_sub_u32 v4, v4, v15               ; c
            v_mul_u32_u24 v5, 9216, v5
            v_lshl_add_u32 v{10+i}, v4, 4, v5
            v_add_u32 v{10+i}, s15, v{10+i}
            """)
    def dma_piece(s, i):
        slot = s & 3
        if wn == 0:
            a(f"s_add_u32 m0, s30, {slot*G1_SLOT + 1024*i}")
            a(f"s_add_u32 s34, s31, {(i*18 + s)*1024}")
            a(f"buffer_load_dwordx4 v10, s[16:19], s34 offen" + (" sc1" if (FUSE and ASC1) else "") + " lds")
        else:
            a(f"s_add_u32 m0, s30, {slot*G1_SLOT + 1024*i}")
            a(f"s_mov_b32 s34, {s*32*9216}")
            if i == 4:
                a("s_mov_b64 exec, 0xffffffff")
            a(f"buffer_load_dwordx4 v{10+i}, s[20:23], s34 offen lds")
            if i == 4:
                a("s_mov_b64 exec, -1")
        vm.issue(("d", s))
    def xread(s, i):
        slot = s & 3
        base = "v6" if slot < 2 else "v7"
        off = (slot & 1) * G1_SLOT
        b = VX[s & 1]
        a(f"ds_read_b128 v[{b+4*i}:{b+4*i+3}], {base} offset:{off + 1024*i}")
        lg.issue(("x", s, i))
    def wread(s, j, mat, h):
        slot = s & 3
        base = "v8" if slot < 2 else "v9"
        if j == 4:
            base = "v252" if slot < 2 else "v253"
        off = (slot & 1) * G1_SLOT + 16384
        r = VW + (j * 2 + mat) * 4 + 2 * h
        o = off + mat * 9216 + (j & 3) * 32 + h * 16 * 288
        a(f"ds_read_b64_tr_b16 v[{r}:{r+1}], {base} offset:{o}")
        lg.issue(("w", s, j, mat, h))
    def fused_ln2():
        if prof: a("s_memtime s[60:61]")
        a("s_waitcnt vmcnt(0) lgkmcnt(0)")
        if prof: a("s_memtime s[62:63]")
        vm.done = vm.issued
        a("s_barrier")
        if wn == 1:
            for s_ in range(3):
                for i in range(nd):
                    dma_piece(s_, i)
        if prof: a("s_memtime s[64:65]")
        if wn == 0:
            a("s_cmp_lg_u32 s3, 0")
            a(f"s_cbranch_scc1 {name}_go")
            srd(a, 48, 8, 64 * 4 * 64, WS_FLG)
            a(f"""
            s_lshl_b32 s52, s11, 7              ; rb*128
            s_lshl_b32 s53, s10, 2
            s_add_u32 s53, s53, s52
            v_mov_b32 v100, 0
            v_mov_b32 v101, 1
            v_lshlrev_b32 v103, 2, v1
            s_mov_b64 exec, 1
            buffer_store_dword v101, v100, s[48:51], s53 offen sc1
            s_mov_b64 exec, 0xffffffff
            s_mov_b32 s53, 0
            """)
            a.label(f"{name}_poll")
            a(f"""
            buffer_load_dword v102, v103, s[48:51], s52 offen sc1
            s_waitcnt vmcnt(0)
            v_cmp_ne_u32 vcc, 0, v102
            s_add_u32 s53, s53, 1
            s_cmp_ge_u32 s53, 0x40000
            s_cbranch_scc1 {name}_go
            s_cmp_eq_u32 vcc_lo, -1
            s_cbranch_scc1 {name}_go
            s_sleep {GSLEEP}
            s_branch {name}_poll
            """)
            a.label(f"{name}_go")
            a("s_mov_b64 exec, -1")
        a("s_barrier")
        if prof:
            a("s_memtime s[66:67]")
            st.n = 4
    if FUSE:
        fused_ln2()
    if not (FUSE and wn == 1):
        for s in range(3):
            for i in range(nd):
                dma_piece(s, i)
    for r in range(ACC, ACC + 32 * NT):
        a(f"v_mov_b32 v{r}, 0")
    if DRY:
        a("s_mov_b32 s47, 1")
        a("s_mov_b64 exec, 0")
        a(f"s_branch {name}_epi{wn}")
        a.label(f"{name}_back{wn}")
        a("s_mov_b64 exec, -1")
        a("s_mov_b32 s47, 0")
    if PRIO and wn == 1:
        a("s_setprio 1")
    vm.need(("d", 0))
    a("s_barrier")
    st.stamp()
    for i in range(4):
        xread(0, i)
    for j in range(NT):
        for mat in range(2):
            for h in range(2):
                wread(0, j, mat, h)
    for s in range(NST):
        nxt = s + 1 < NST
        if FINE and s in (7, 8): st.stamp()
        pair = PAIR and s >= 2
        if nxt and not pair:
            vm.need(("d", s + 1))
            if FINE and s in (7, 8): st.stamp()
            a("s_barrier")
        elif nxt and s % 2 == 0:
            lg.drain()
            vm.need(("d", min(s + 2, NST - 1)))
            a("s_barrier")
        if FINE:
            if s in (7, 8): st.stamp()
        elif s in (1, 5, 9, 13, 17):
            st.stamp()
        b = VX[s & 1]
        fill = []
        early = []
        if nxt:
            fill += [("x", i) for i in range(4)]
        if pair:
            tgt = [t for t in (s + 3, s + 4) if t < NST] if s % 2 == 0 else []
        else:
            tgt = [s + 3] if s + 3 < NST else []
        early = [(t, i) for t in tgt for i in range(nd)]
        pend = []
        groups = [(j, mat) for j in range(NT) for mat in range(2)]
        for gi, (j, mat) in enumerate(groups):
            w = VW + (j * 2 + mat) * 4
            for i in range(4):
                lg.need(("w", s, j, mat, 0), ("w", s, j, mat, 1), ("x", s, i))
                c = acc(i, j, mat)
                a(f"v_mfma_f32_16x16x32_bf16 v[{c}:{c+3}], v[{w}:{w+3}], v[{b+4*i}:{b+4*i+3}], v[{c}:{c+3}]")
                if early and (i & 1) == 0:
                    k, idx = early.pop(0)
                    dma_piece(k, idx)
                elif pend:
                    wread(*pend.pop(0))
                elif fill:
                    k, idx = fill.pop(0)
                    if k == "x": xread(s + 1, idx)
                    else: dma_piece(s + 3, idx)
            if nxt:
                pend += [(s + 1, j, mat, 0), (s + 1, j, mat, 1)]
        while early:
            k, idx = early.pop(0)
            dma_piece(k, idx)
        while pend:
            wread(*pend.pop(0))
        while fill:
            k, idx = fill.pop(0)
            if k == "x": xread(s + 1, idx)
            else: dma_piece(s + 3, idx)
    st.stamp()
    a.label(f"{name}_epi{wn}")
    a(f"""
    s_lshl_b32 s14, s11, 4
    s_lshl_b32 s15, s13, 2
    s_add_u32 s14, s14, s15
    s_mul_i32 s35, s14, {144*1024}
    s_mul_i32 s36, s10, 9
    s_add_u32 s39, s36, s44
    s_add_u32 s39, s39, {4*wn}
    s_lshl_b32 s39, s39, 9
    s_add_u32 s39, s39, s35
    s_xor_b32 s40, s44, 1
    s_lshl_b32 s40, s40, 3
    s_add_u32 s40, s40, s36
    s_lshr_b32 s40, s40, 1
    s_lshl_b32 s40, s40, 10
    s_lshl_b32 s41, s44, 3
    s_add_u32 s40, s40, s41
    s_add_u32 s40, s40, s35
    s_mov_b32 s42, {f32hex(-math.log2(math.e))}
    s_mov_b32 s43, {f32hex(-math.log2(math.e))}
    s_nop 7
    """)
    def silu_multi(items):
        G = [(acc(i, j, 0), acc(i, j, 1), T, D) for (i, j, T, D) in items]
        for g, u, T, D in G:
            a(f"v_pk_mul_f32 v[{T}:{T+1}], v[{g}:{g+1}], s[42:43]")
            a(f"v_pk_mul_f32 v[{T+2}:{T+3}], v[{g+2}:{g+3}], s[42:43]")
        for g, u, T, D in G:
            for r in range(4): a(f"v_exp_f32 v{T+r}, v{T+r}")
        for g, u, T, D in G:
            a(f"v_pk_mul_f32 v[{g}:{g+1}], v[{g}:{g+1}], v[{u}:{u+1}]")
            a(f"v_pk_mul_f32 v[{g+2}:{g+3}], v[{g+2}:{g+3}], v[{u+2}:{u+3}]")
        for g, u, T, D in G:
            a(f"v_pk_add_f32 v[{T}:{T+1}], v[{T}:{T+1}], 1.0 op_sel_hi:[1,0]")
            a(f"v_pk_add_f32 v[{T+2}:{T+3}], v[{T+2}:{T+3}], 1.0 op_sel_hi:[1,0]")
        for g, u, T, D in G:
            for r in range(4): a(f"v_rcp_f32 v{T+r}, v{T+r}")
        a("s_nop 0")
        for g, u, T, D in G:
            a(f"v_pk_mul_f32 v[{T}:{T+1}], v[{g}:{g+1}], v[{T}:{T+1}]")
            a(f"v_pk_mul_f32 v[{T+2}:{T+3}], v[{g+2}:{g+3}], v[{T+2}:{T+3}]")
        for g, u, T, D in G:
            a(f"v_cvt_pk_bf16_f32 v{D}, v{T}, v{T+1}")
            a(f"v_cvt_pk_bf16_f32 v{D+1}, v{T+2}, v{T+3}")
    k = 0
    for p in range(2):
        for i in range(4):
            T = 16 + 16 * (k & 3); k += 1
            silu_multi([(i, 2 * p, T, T + 8), (i, 2 * p + 1, T + 4, T + 10)])
            a(f"s_add_u32 s41, s39, {i*144*1024 + p*1024}")
            a(f"buffer_store_dwordx4 v[{T+8}:{T+11}], v2, s[24:27], s41 offen")
    if wn == 0:
        for i2 in range(2):
            T = 16 + 16 * (k & 3); k += 1
            silu_multi([(2 * i2, 4, T, T + 8), (2 * i2 + 1, 4, T + 4, T + 10)])
            for q in range(2):
                a(f"s_add_u32 s41, s40, {(2*i2+q)*144*1024}")
                a(f"buffer_store_dwordx2 v[{T+8+2*q}:{T+9+2*q}], v2, s[24:27], s41 offen")
    if DRY:
        a("s_cmp_eq_u32 s47, 1")
        a(f"s_cbranch_scc1 {name}_back{wn}")
    st.stamp()
    if prof:
        a("s_waitcnt vmcnt(0)")
    st.stamp()
    if prof and FUSE:
        a("s_waitcnt lgkmcnt(0)")
        a(f"s_mov_b32 s{st.base + 2*st.n}, s100")
        st.n += 1
    st.dump(8, 3, 8)
```

```python
from gen_common import *
from gen_ln1 import ln1_body
from gen_kgen import kgen_body
import os
if int(os.environ.get('G2E', '0')):
    from gen_gemm2e import w2pack_body
else:
    from gen_gemm2 import w2pack_body

CSTR = 4384
KB = 8 * CSTR
FRONT_LDS = 40960
NLN = 128
import os
SLEEP = int(os.environ.get('FSLEEP', '8'))
WPL = int(os.environ.get('WPL', '1'))
FRONT_GRID = NLN + 576 + (16 if WPL else 144)

def front_kernel(a, name, prof=False):
    kernel_header(a, name)
    a(f"s_cmp_ge_u32 s2, {FRONT_GRID}")
    a(f"s_cbranch_scc1 {name}_end")
    a(f"s_cmp_ge_u32 s2, {NLN+576}")
    a(f"s_cbranch_scc1 {name}_wp")
    a(f"s_cmp_ge_u32 s2, {NLN}")
    a(f"s_cbranch_scc1 {name}_ch")
    a(f"""
    s_load_dwordx2 s[44:45], s[0:1], {ARG['dbg']}
    s_mov_b32 s47, s2
    v_mov_b32 v140, v0
    v_lshrrev_b32 v1, 6, v0
    s_nop 0
    v_readfirstlane_b32 s46, v1
    v_and_b32 v0, 63, v0
    s_and_b32 s4, s2, 7
    s_lshr_b32 s2, s2, 3
    s_lshl_b32 s4, s4, 4
    s_add_u32 s2, s2, s4
    """)
    sl = Stamps(a, prof, kid=5, vr=130)
    sl.stamp()
    ln1_body(a, wt=True)
    sl.stamp()
    a("s_waitcnt vmcnt(0)")
    sl.stamp()
    a(f"""
    s_barrier
    s_cmp_lg_u32 s46, 0
    s_cbranch_scc1 {name}_lnx
    v_mov_b32 v1, 1
    v_mov_b32 v2, 0
    """)
    sl.stamp()
    a(f"""
    s_mov_b64 exec, 1
    global_atomic_add v3, v2, v1, s[44:45] sc0 sc1
    s_waitcnt vmcnt(0)
    v_readfirstlane_b32 s4, v3
    s_cmp_lg_u32 s4, {NLN-1}
    s_cbranch_scc1 {name}_lnx
    global_store_dword v2, v1, s[44:45] offset:128 sc1
    """)
    a.label(f"{name}_lnx")
    sl.dump(6, 46, 1)
    if WPL:
        a("s_mov_b64 exec, -1")
        a("s_setprio 0")
        a("v_mov_b32 v0, v140")
        a("s_mov_b32 s2, s47")
        a(f"s_branch {name}_wp2")
    else:
        a(f"s_branch {name}_end")
    a.label(f"{name}_wp")
    a(f"s_sub_u32 s2, s2, {NLN+576 - (128 if WPL else 0)}")
    a.label(f"{name}_wp2")
    w2pack_body(a, name + "_wp0", 2)
    a(f"s_branch {name}_end")
    a.label(f"{name}_ch")
    a(f"s_sub_u32 s2, s2, {NLN}")
    a(f"s_load_dwordx2 s[44:45], s[0:1], {ARG['dbg']}")
    st = kgen_body(a, name, 2, prof, fused=True)
    a(f"""
    v_lshlrev_b32 v6, 4, v0             ; tid*16
    v_readfirstlane_b32 s32, v14
    v_readfirstlane_b32 s3, v1          ; wave
    ds_write_b128 v6, v[32:35] offset:{KB}
    v_mov_b32 v36, 0
    v_mov_b32 v37, 0
    v_mov_b32 v38, 0
    v_mov_b32 v39, 0
    v_cmp_gt_u32 vcc, 16, v0
    s_and_saveexec_b64 s[24:25], vcc
    ds_write_b128 v6, v[36:39] offset:{KB + 4096}
    s_mov_b64 exec, -1
    """)
    srd(a, 8, 22, 576 * TS, WS_UT)
    srd(a, 16, 22, 576 * TS, WS_YT)
    a(f"s_mul_i32 s28, s2, {TS}")
    a("v_mov_b32 v2, 0")
    a("s_mov_b32 s5, 0")
    a("s_cmp_lg_u32 s3, 0")
    a(f"s_cbranch_scc1 {name}_go")
    a.label(f"{name}_poll")
    a(f"""
    global_load_dword v3, v2, s[44:45] offset:128 sc1
    s_waitcnt vmcnt(0)
    v_readfirstlane_b32 s4, v3
    s_add_u32 s5, s5, 1
    s_cmp_ge_u32 s5, 0x40000
    s_cbranch_scc1 {name}_go
    s_cmp_ge_u32 s4, 1
    s_cbranch_scc1 {name}_go
    s_sleep {SLEEP}
    s_branch {name}_poll
    """)
    a.label(f"{name}_go")
    a(f"""
    s_waitcnt lgkmcnt(0)
    s_barrier
    buffer_load_dwordx4 v[8:11], v6, s[8:11], s28 offen sc1
    """)
    st.stamp()
    a(f"""
    v_cmp_gt_u32 vcc, 18, v0
    s_and_saveexec_b64 s[24:25], vcc
    ds_write_b128 v6, v[36:39] offset:{7*CSTR-32}
    s_mov_b64 exec, -1
    s_waitcnt vmcnt(0)
    ds_write_b128 v6, v[8:11] offset:{7*CSTR + 256}
    v_and_b32 v2, 63, v0
    v_and_b32 v40, 15, v2               ; n / j
    v_lshrrev_b32 v41, 4, v2            ; g
    v_sub_u32 v42, v41, v40
    v_lshlrev_b32 v42, 4, v42
    v_add_u32 v42, {KB + 240}, v42      ; v42 = kaddr
    v_and_b32 v43, 3, v40
    v_lshrrev_b32 v44, 3, v40
    v_lshl_add_u32 v43, v44, 2, v43     ; p
    v_lshrrev_b32 v45, 2, v40
    v_xor_b32 v45, v45, v44
    v_and_b32 v45, 1, v45               ; q
    v_mul_u32_u24 v43, {CSTR}, v43
    v_lshl_add_u32 v43, v45, 8, v43
    v_lshl_add_u32 v43, v41, 4, v43     ; v43 = uaddr
    v_lshrrev_b32 v44, 1, v41
    v_xor_b32 v45, v41, v44
    v_and_b32 v45, 1, v45
    v_lshlrev_b32 v46, 4, v40
    v_lshl_add_u32 v46, v45, 8, v46
    v_lshl_add_u32 v46, v44, 3, v46
    s_waitcnt lgkmcnt(0)
    s_barrier
    """)
    st.stamp()
    for k in range(2):
        W = 48 + 8 * k
        if k == 1:
            a("v_cmp_gt_u32 vcc, 16, v0")
            a("s_and_saveexec_b64 s[24:25], vcc")
            a(f"s_cbranch_execz {name}_bdone")
        a(f"ds_read_b128 v[{W}:{W+3}], v6 offset:{7*CSTR - 16 + 4096*k}")
        a(f"ds_read_b128 v[{W+4}:{W+7}], v6 offset:{7*CSTR + 4096*k}")
        a("s_waitcnt lgkmcnt(0)")
        for p in range(7):
            s = p + 1
            dst = 8 + 4 * p
            j0 = s // 2
            if s % 2 == 1:
                for q in range(4):
                    a(f"v_alignbit_b32 v{dst+q}, v{W+j0+q+1}, v{W+j0+q}, 16")
                a(f"ds_write_b128 v6, v[{dst}:{dst+3}] offset:{p*CSTR + 4096*k}")
            elif j0 % 2 == 0:
                a(f"ds_write_b128 v6, v[{W+j0}:{W+j0+3}] offset:{p*CSTR + 4096*k}")
            else:
                for q in range(4):
                    a(f"v_mov_b32 v{dst+q}, v{W+j0+q}")
                a(f"ds_write_b128 v6, v[{dst}:{dst+3}] offset:{p*CSTR + 4096*k}")
    a.label(f"{name}_bdone")
    a("""
    s_mov_b64 exec, -1
    s_waitcnt lgkmcnt(0)
    s_barrier
    """)
    st.stamp()
    a(f"""
    v_mov_b32 v4, v42
    v_mov_b32 v5, v43
    v_mov_b32 v7, v46
    s_lshr_b32 s4, s3, 1
    s_and_b32 s5, s2, 1
    s_cmp_lg_u32 s4, s5
    s_cbranch_scc1 {name}_fin
    s_and_b32 s4, s3, 1
    s_cmp_eq_u32 s4, 1
    s_cbranch_scc1 {name}_mB
    """)
    for path, tiles in (("A", [0, 3, 4, 7]), ("B", [1, 2, 5, 6])):
        if path == "B":
            a.label(f"{name}_mB")
        ACC = 16
        FR = [32, 96]
        nf = max(tiles) + 1
        for r in range(16):
            a(f"v_mov_b32 v{ACC+r}, 0")
        lg = Cnt(a, "lgkmcnt")
        def rd_k(e, g):
            b = FR[e & 1]
            a(f"ds_read_b128 v[{b+4*g}:{b+4*g+3}], v4 offset:{512*(7-g) + 64*(7-e)}")
            lg.issue(("k", e, g))
        def rd_u(e, g):
            b = FR[e & 1]
            a(f"ds_read_b128 v[{b+32+4*g}:{b+32+4*g+3}], v5 offset:{512*g + 64*(7-e)}")
            lg.issue(("u", e, g))
        for g in range(nf):
            rd_k(0, g); rd_u(0, g)
        for e in range(8):
            b = FR[e & 1]
            fill = []
            if e < 7:
                for g in range(nf):
                    fill += [(rd_k, g), (rd_u, g)]
            for ti, tau in enumerate(tiles):
                for gam in range(tau + 1):
                    beta = tau - gam
                    lg.need(("k", e, gam), ("u", e, beta))
                    c = ACC + 4 * ti
                    a(f"v_mfma_f32_16x16x32_f16 v[{c}:{c+3}], v[{b+32+4*beta}:{b+32+4*beta+3}], v[{b+4*gam}:{b+4*gam+3}], v[{c}:{c+3}]")
                    if fill:
                        f, g = fill.pop(0); f(e + 1, g)
        a("s_nop 7")
        for ti, tau in enumerate(tiles):
            c = ACC + 4 * ti
            for r in range(4):
                a(f"v_mul_f32 v{c+r}, s32, v{c+r}")
            a(f"v_cvt_pk_bf16_f32 v{8+2*ti}, v{c}, v{c+1}")
            a(f"v_cvt_pk_bf16_f32 v{9+2*ti}, v{c+2}, v{c+3}")
            a(f"buffer_store_dwordx2 v[{8+2*ti}:{9+2*ti}], v7, s[16:19], s28 offen offset:{512*tau}")
        if path == "A":
            a(f"s_branch {name}_fin")
    a.label(f"{name}_fin")
    st.stamp()
    st.dump(22, 3, 4)
    a.label(f"{name}_end")
    a("s_endpgm")
    return kernel_desc(name, 164, sgpr=102)
```
